```python
import torch

def _softmax(x, axis=-1):
    return torch.softmax(x, dim=axis)
def _gelu(x):
    return torch.nn.functional.gelu(x, approximate="tanh")
def _silu(x):
    return torch.nn.functional.silu(x)
def _sigmoid(x):
    return torch.sigmoid(x)
def _layernorm(x, axis=-1, eps=1e-5):
    m = x.mean(dim=axis, keepdim=True)
    v = x.var(dim=axis, keepdim=True, unbiased=False)
    return (x - m) / torch.sqrt(v + eps)
def _scatter_add(tgt, idx, src, axis=0):
    return tgt.clone().index_add_(axis, idx, src)
def _segment_sum(src, seg, n):
    out = torch.zeros((n,) + src.shape[1:], dtype=src.dtype)
    return out.index_add_(0, seg, src)
def _pad(x, pw):
    flat = tuple(v for pair in reversed(pw) for v in pair)
    return torch.nn.functional.pad(x, flat)

kernel_name = 'interleave_layers__linear_kernel_hedgehog__mixer_s_mlp__prompt'

def setup_inputs():

    _w = (lambda a: (lambda t: t.to(torch.bfloat16) if t.is_floating_point() else t)(torch.as_tensor(a)))
    def _A_setup():
        B, S, D, H = 1, 2048, 448, 16
        Dh = D // H
        return {
            "x": _w((lambda *s: torch.randn(*s, dtype=torch.bfloat16) * 0.05)(B, S, D)),
            "wqkv": _w((lambda *s: torch.randn(*s, dtype=torch.bfloat16) * 0.4)(D, 3 * D)),
            "w_phi": _w((lambda *s: torch.randn(*s, dtype=torch.bfloat16) * 0.4)(H, Dh, Dh) * (Dh ** -0.5)),
            "wo": _w((lambda *s: torch.randn(*s, dtype=torch.bfloat16) * 0.05)(D, D)),
        }
    _A_in = _A_setup()

    def _B_setup():
        B, S, D, F = 1, 2048, 448, 1792
        return {
            "x":  _w((lambda *s: torch.randn(*s, dtype=torch.bfloat16) * 0.05)(B, S, D)),
            "w1": _w((lambda *s: torch.randn(*s, dtype=torch.bfloat16) * 3.2)(D, D) * (D ** -0.5)),
            "w2": _w((lambda *s: torch.randn(*s, dtype=torch.bfloat16) * 3.2)(D, D) * (D ** -0.5)),
            "w3": _w((lambda *s: torch.randn(*s, dtype=torch.bfloat16) * 3.2)(D, F) * (D ** -0.5)),
            "w4": _w((lambda *s: torch.randn(*s, dtype=torch.bfloat16) * 3.2)(F, D) * (F ** -0.5)),
        }
    _B_in = _B_setup()

    return {
        "A_x": _A_in["x"],
        "A_wqkv": _A_in["wqkv"],
        "A_w_phi": _A_in["w_phi"],
        "A_wo": _A_in["wo"],
        "B_x": _B_in["x"],
        "B_w1": _B_in["w1"],
        "B_w2": _B_in["w2"],
        "B_w3": _B_in["w3"],
        "B_w4": _B_in["w4"],
    }

def reference(A_x, A_wqkv, A_w_phi, A_wo, B_x, B_w1, B_w2, B_w3, B_w4):
    def _A_ref(x, wqkv, w_phi, wo):
        B, S, D = x.shape
        H = 16; Dh = D // H
        qkv = (lambda x, *d: x.permute(*d))((x @ wqkv).reshape(B, S, 3, H, Dh), 2, 0, 3, 1, 4)
        q, k, v = qkv[0], qkv[1], qkv[2]
        pq = torch.einsum("bhsd,hdf->bhsf", q, w_phi)
        pk = torch.einsum("bhsd,hdf->bhsf", k, w_phi)
        phi_q = torch.concatenate([_softmax(pq, axis=-1), _softmax(-pq, axis=-1)], axis=-1)
        phi_k = torch.concatenate([_softmax(pk, axis=-1), _softmax(-pk, axis=-1)], axis=-1)
        kv = torch.einsum("bhsf,bhsd->bhfd", phi_k, v)
        z  = torch.einsum("bhsf->bhf", phi_k)
        num = torch.einsum("bhqf,bhfd->bhqd", phi_q, kv)
        den = torch.einsum("bhqf,bhf->bhq", phi_q, z)[..., None] + 1e-6
        o = num / den
        return (lambda x, *d: x.permute(*d))(o, 0, 2, 1, 3).reshape(B, S, D) @ wo

    def _B_ref(x, w1, w2, w3, w4):
        B, S, D = x.shape
        h = _gelu(_layernorm(x, axis=-1) @ w1)
        c = D // 4
        g0 = _pad(h[:, :, 0*c:1*c], ((0, 0), (1, 0), (0, 0)))[:, :S, :]
        g1 = _pad(h[:, :, 1*c:2*c], ((0, 0), (0, 1), (0, 0)))[:, 1:, :]
        g2 = _pad(h[:, :, 2*c:3*c], ((0, 0), (2, 0), (0, 0)))[:, :S, :]
        g3 = _pad(h[:, :, 3*c:   ], ((0, 0), (0, 2), (0, 0)))[:, 2:, :]
        hs = torch.concatenate([g0, g1, g2, g3], axis=-1) @ w2
        x1 = x + hs
        h2 = _gelu(_layernorm(x1, axis=-1) @ w3) @ w4
        return x1 + h2

    x = A_x
    x = x + _A_ref(_layernorm(x, axis=-1), A_wqkv, A_w_phi, A_wo)
    x = x + _B_ref(_layernorm(x, axis=-1), B_w1, B_w2, B_w3, B_w4)
    x = x + _A_ref(_layernorm(x, axis=-1), A_wqkv, A_w_phi, A_wo)
    x = x + _B_ref(_layernorm(x, axis=-1), B_w1, B_w2, B_w3, B_w4)
    return x
```

```python
import re

REG_RE = re.compile(r'\b([vas])\[(\d+):(\d+)\]|\b([vas])(\d+)\b|\b(vcc|exec|m0|scc)\b')

def regs_of(tok):
    out = []
    for m in REG_RE.finditer(tok):
        if m.group(1):
            out += [(m.group(1), i) for i in range(int(m.group(2)), int(m.group(3)) + 1)]
        elif m.group(4):
            out.append((m.group(4), int(m.group(5))))
        else:
            n = m.group(6)
            out.append((n, 0))
    return out

TRANS = ('v_exp_f32', 'v_log_f32', 'v_rcp_f32', 'v_rsq_f32', 'v_sqrt_f32', 'v_sin_f32', 'v_cos_f32', 'v_rcp_iflag_f32')

class Ins:
    __slots__ = ('text', 'op', 'cls', 'dst', 'src', 'ws', 'passes', 'srcc', 'ops')
    def __init__(self, text):
        self.text = text
        t = text.split(';')[0].strip()
        parts = t.split(None, 1)
        self.op = parts[0]
        ops = [o.strip() for o in parts[1].split(',')] if len(parts) > 1 else []
        self.ops = ops
        op = self.op
        self.ws = 1
        self.passes = 0
        self.srcc = []
        self.dst = []
        self.src = []
        if op == 's_nop':
            self.cls = 'nop'; self.ws = int(ops[0], 0) + 1
        elif op.startswith('v_mfma'):
            self.cls = 'mfma'
            self.passes = 8 if '32x32' in op else 4
            self.dst = regs_of(ops[0]); self.src = regs_of(ops[1]) + regs_of(ops[2]); self.srcc = regs_of(ops[3])
        elif op.startswith('v_permlane'):
            self.cls = 'permlane'
            self.dst = regs_of(ops[0]) + regs_of(ops[1]); self.src = list(self.dst)
        elif op.startswith('v_readfirstlane') or op.startswith('v_readlane'):
            self.cls = 'readlane'
            self.dst = regs_of(ops[0]); self.src = sum((regs_of(o) for o in ops[1:]), [])
        elif op.startswith('v_cmp'):
            self.cls = 'valu'
            self.dst = regs_of(ops[0]); self.src = sum((regs_of(o) for o in ops[1:]), [])
            if op.startswith('v_cmpx'): self.dst += [('exec', 0)]
        elif op.startswith('v_'):
            self.cls = 'trans' if any(op.startswith(x) for x in TRANS) else 'valu'
            if '_co_' in op:
                self.dst = regs_of(ops[0]) + regs_of(ops[1]); self.src = sum((regs_of(o) for o in ops[2:]), [])
            else:
                self.dst = regs_of(ops[0]); self.src = sum((regs_of(o) for o in ops[1:]), [])
            if op.startswith('v_fmac') or op.startswith('v_dot2c') or op.startswith('v_pk_fmac'):
                self.src += self.dst
            if op.startswith('v_cndmask') and len(ops) == 3:
                self.src += [('vcc', 0)]
            if 'dpp' in t or 'quad_perm' in t or 'row_' in t:
                self.cls = 'dpp'
            if op.startswith('v_dot'):
                self.cls = 'dot'
        elif op.startswith('buffer_') or op.startswith('global_') or op.startswith('flat_'):
            self.cls = 'vmem'
            if 'load' in op and ' lds' not in t:
                self.dst = regs_of(ops[0]); self.src = sum((regs_of(o) for o in ops[1:]), [])
            elif 'atomic' in op and 'sc0' in t:
                self.dst = regs_of(ops[0]); self.src = sum((regs_of(o) for o in ops), [])
            else:
                self.src = sum((regs_of(o) for o in ops), [])
            if ' lds' in t: self.src += [('m0', 0)]
        elif op.startswith('ds_'):
            self.cls = 'ds'
            if 'read' in op or 'bpermute' in op or 'permute' in op or 'swizzle' in op:
                self.dst = regs_of(ops[0]); self.src = sum((regs_of(o) for o in ops[1:]), [])
            else:
                self.src = sum((regs_of(o) for o in ops), [])
        elif op.startswith('s_'):
            self.cls = 'salu'
            if op.startswith('s_load') or op.startswith('s_buffer_load'):
                self.cls = 'smem'
                self.dst = regs_of(ops[0]); self.src = sum((regs_of(o) for o in ops[1:]), [])
            elif op.startswith('s_cmp') or op.startswith('s_cbranch') or op.startswith('s_branch') or op in ('s_waitcnt', 's_barrier', 's_endpgm', 's_sleep', 's_setprio'):
                self.src = sum((regs_of(o) for o in ops), [])
            else:
                self.dst = regs_of(ops[0]) if ops else []
                self.src = sum((regs_of(o) for o in ops[1:]), [])
                if 'saveexec' in op: self.dst += [('exec', 0)]
        else:
            raise ValueError('unknown op ' + op)

def is_valu_like(i):
    return i.cls in ('valu', 'trans', 'dpp', 'permlane', 'readlane', 'dot')

def wide_store(i):
    return i.cls == 'vmem' and ('store' in i.op) and ('x4' in i.op or 'x3' in i.op)

def required(prev, cur):
    need = 0
    pd = set(prev.dst)
    cs = set(cur.src); cd = set(cur.dst); cc = set(cur.srcc)
    vd = {r for r in pd if r[0] in 'va'}
    sd = {r for r in pd if r[0] in ('s', 'vcc', 'exec')}
    if is_valu_like(prev):
        if cur.cls == 'mfma' and vd & (cs | cc): need = max(need, 2)
        if cur.cls == 'permlane' and vd & cs: need = max(need, 2)
        if cur.cls == 'dpp' and vd & cs: need = max(need, 2)
        if cur.cls == 'readlane' and vd & cs: need = max(need, 1)
        if prev.cls == 'trans' and is_valu_like(cur) and cur.cls != 'trans' and vd & cs: need = max(need, 1)
        if prev.cls == 'trans' and cur.cls == 'mfma' and vd & (cs | cc): need = max(need, 2)
        if sd:
            if cur.cls == 'vmem' and sd & cs: need = max(need, 5)
            if is_valu_like(cur) and sd & cs: need = max(need, 4 if cur.cls == 'readlane' else 2)
            if cur.cls in ('salu', 'smem') and sd & cs: need = max(need, 2)
            if ('exec', 0) in sd:
                if cur.cls in ('mfma', 'permlane', 'readlane'): need = max(need, 4)
                if cur.cls == 'dpp': need = max(need, 5)
    if prev.cls == 'dot' and cur.cls not in ('salu', 'smem', 'nop'):
        if cur.op == prev.op:
            ab = set(regs_of(cur.ops[1]) + regs_of(cur.ops[2]))
            if vd & ab: need = max(need, 3)
        elif vd & (cs | cd | cc): need = max(need, 3)
    if prev.cls == 'mfma':
        P = prev.passes
        tbl_ab = {4: 8, 8: 12}[P]
        tbl_c_part = {4: 6, 8: 10}[P]
        if cur.cls == 'mfma':
            if vd & cs: need = max(need, tbl_ab)
            if vd & cc:
                same = (sorted(prev.dst) == sorted(cur.srcc)) and prev.passes == cur.passes
                if not same: need = max(need, tbl_c_part)
            if vd & cd and not (vd & cc):
                need = max(need, tbl_ab)
        else:
            if vd & (cs | cd) and cur.cls not in ('salu', 'smem', 'nop'): need = max(need, tbl_ab)
        if is_valu_like(cur) and set(prev.srcc) & cd:
            need = max(need, {4: 3, 8: 7}[P])
    if wide_store(prev):
        data = set(regs_of(prev.ops[0] if prev.op.startswith('buffer') else prev.ops[1]))
        if data & cd: need = max(need, 2)
    if prev.cls == 'salu' and ('m0', 0) in pd and cur.cls == 'vmem' and ('m0', 0) in cs:
        need = max(need, 1)
    return need

class Asm:
    def __init__(self):
        self.out = []
        self.hist = []
        self.nops_inserted = 0
    def raw(self, s):
        self.out.append(s)
    def label(self, name):
        self.out.append(name + ':')
    def flush_hazards(self, n=13):
        self('s_nop %d' % min(15, n - 1))
    def __call__(self, text):
        for line in text.strip().split('\n'):
            line = line.strip()
            if not line or line.startswith(';'):
                if line: self.out.append('    ' + line)
                continue
            ins = Ins(line)
            dist = 0
            pad = 0
            for prev in reversed(self.hist):
                need = required(prev, ins)
                if need > dist:
                    pad = max(pad, need - dist)
                dist += prev.ws
                if dist >= 24: break
            while pad > 0:
                k = min(pad, 16)
                nop = Ins('s_nop %d' % (k - 1))
                self.out.append('    s_nop %d' % (k - 1))
                self.hist.append(nop)
                self.nops_inserted += 1
                pad -= k
            self.out.append('    ' + line)
            self.hist.append(ins)
            if len(self.hist) > 64: self.hist = self.hist[-40:]
    def text(self):
        return '\n'.join(self.out) + '\n'
```

```python
import sys
sys.path.insert(0, 'gen')
from asmlib import Asm

S, D, H, DH, F = 2048, 448, 16, 28, 1792
MB = 1 << 20
def wsoff(L, name):
    return L * 32 * MB + dict(KVP=0, PHIQ=2 * MB, O=6 * MB, XP=8 * MB, HH=10 * MB, X1=12 * MB, STATS=14 * MB, G=16 * MB, X2=24 * MB)[name]
SZ_X = S * D * 2
SZ_G = S * F * 2
SZ_KVP = 16 * 16 * 8192
SZ_PHIQ = S * 16 * 128
SZ_STATS = S * 8
P = dict(x=16, wqkv=18, wphi=20, wo=22, bx=24, w1=26, w2=28, w3=30, w4=32, out=34, dbg=36, ws=38)

LOG2E = 1.4426950408889634
def f32hex(x):
    import struct
    return '0x%08x' % struct.unpack('<I', struct.pack('<f', x))[0]

ACT = 16
WST = 72
FRG = 128
ACC = 184
MISC = 212

class Kern:
    def __init__(self, name, lds):
        self.name = name; self.lds = lds
        self.a = Asm()
    def begin(self):
        a = self.a
        a.raw('.p2align 8')
        a.raw('.globl %s' % self.name)
        a.raw('.type %s,@function' % self.name)
        a.raw('%s:' % self.name)
        a('s_cmp_ge_u32 s2, 256')
        a('s_cbranch_scc1 L_end_%s' % self.name)
        a('s_load_dwordx16 s[16:31], s[0:1], 0x0')
        a('s_load_dwordx8 s[32:39], s[0:1], 0x40')
        a('''s_and_b32 s3, s2, 7
             s_lshr_b32 s6, s2, 3
             s_and_b32 s6, s6, 1
             s_lshl_b32 s6, s6, 3
             s_or_b32 s3, s3, s6
             s_lshr_b32 s4, s2, 4
             v_and_b32 v1, 63, v0
             v_and_b32 v2, 15, v1
             v_lshrrev_b32 v3, 4, v1
             v_bfe_u32 v4, v1, 2, 2
             v_and_b32 v5, 3, v1
             v_lshrrev_b32 v6, 6, v0
             v_readfirstlane_b32 s5, v6
             s_lshl_b32 s8, s3, 7
             s_lshl_b32 s9, s5, 4
             s_add_u32 s8, s8, s9
             v_add_u32 v7, s8, v2
             s_waitcnt lgkmcnt(0)''')
    def end(self):
        a = self.a
        a.label('L_end_%s' % self.name)
        a('s_endpgm')
    def srd(self, d, ptr, off, size):
        a = self.a
        p = P[ptr]
        if off:
            a('s_add_u32 s%d, s%d, 0x%x' % (d, p, off))
            a('s_addc_u32 s%d, s%d, 0' % (d + 1, p + 1))
        else:
            a('s_mov_b32 s%d, s%d' % (d, p))
            a('s_mov_b32 s%d, s%d' % (d + 1, p + 1))
        a('s_mov_b32 s%d, 0x%x' % (d + 2, size))
        a('s_mov_b32 s%d, 0x00020000' % (d + 3))
    def desc(self):
        return '''.amdhsa_kernel %s
  .amdhsa_next_free_vgpr 256
  .amdhsa_next_free_sgpr 96
  .amdhsa_accum_offset 256
  .amdhsa_group_segment_fixed_size 0
  .amdhsa_kernarg_size 96
  .amdhsa_user_sgpr_count 2
  .amdhsa_user_sgpr_kernarg_segment_ptr 1
  .amdhsa_system_sgpr_workgroup_id_x 1
.end_amdhsa_kernel
''' % self.name

def magic_div(d, maxv):
    for sh in range(8, 24):
        m = -(-(1 << sh) // d)
        if all((t * m) >> sh == t // d for t in range(maxv)) and m * maxv < (1 << 24):
            return m, sh
    raise ValueError

def vr(b, n=4):
    return 'v[%d:%d]' % (b, b + n - 1)

class DsBase:
    def __init__(self, a, reg, extra_regs):
        self.a = a; self.reg = reg; self.extra = list(extra_regs); self.made = {}
    def prep(self, maxoff):
        k = 1
        while maxoff >= k * 61440:
            r = self.extra[k - 1]
            self.a('v_add_u32 v%d, 0x%x, v%d' % (r, k * 61440, self.reg))
            self.made[k] = r
            k += 1
    def at(self, off):
        k = off // 61440
        r = self.reg if k == 0 else self.made[k]
        return 'v%d' % r, off - k * 61440

def w_stage_issue(k, srd, wstride, K, NT, R, segs, tmp, dst=WST):
    a = k.a
    CH = 2 * NT
    used = R * CH
    assert used <= 512 and K % R == 0
    rounds = K // R
    m, sh = magic_div(CH, 512)
    t0, t1 = tmp, tmp + 1
    a('v_min_u32 v%d, %d, v0' % (t0, used - 1))
    a('v_mul_u32_u24 v%d, %d, v%d' % (t1, m, t0))
    a('v_lshrrev_b32 v%d, %d, v%d' % (t1, sh, t1))
    a('v_mul_u32_u24 v%d, %d, v%d' % (tmp + 2, CH, t1))
    a('v_sub_u32 v%d, v%d, v%d' % (t0, t0, tmp + 2))
    a('s_mov_b32 s10, %d' % wstride)
    a('v_mul_lo_u32 v%d, v%d, s10' % (tmp + 2, t1))
    if len(segs) == 1:
        imm, jmul, _ = segs[0]
        a('s_mul_i32 s10, s4, %d' % jmul)
        a('s_add_u32 s10, s10, %d' % imm)
        a('v_lshlrev_b32 v%d, 4, v%d' % (tmp + 3, t0))
        a('v_add3_u32 v%d, v%d, v%d, s10' % (tmp + 2, tmp + 2, tmp + 3))
    else:
        segstride = segs[1][0] - segs[0][0]
        jmul = segs[0][1]
        a('s_mul_i32 s10, s4, %d' % jmul)
        a('v_lshrrev_b32 v%d, 2, v%d' % (tmp + 3, t0))
        a('v_mul_u32_u24 v%d, %d, v%d' % (tmp + 3, segstride, tmp + 3))
        a('v_add3_u32 v%d, v%d, v%d, s10' % (tmp + 2, tmp + 2, tmp + 3))
        a('v_and_b32 v%d, 3, v%d' % (tmp + 3, t0))
        a('v_lshlrev_b32 v%d, 4, v%d' % (tmp + 3, tmp + 3))
        a('v_add_u32 v%d, v%d, v%d' % (tmp + 2, tmp + 2, tmp + 3))
    for i in range(rounds):
        a('s_mov_b32 s10, 0x%x' % (i * R * wstride))
        a('buffer_load_dwordx4 %s, v%d, s[%d:%d], s10 offen' % (vr(dst + 4 * i), tmp + 2, srd, srd + 3))
    RS = 32 * NT
    a('v_bfe_u32 v%d, v%d, 3, 1' % (tmp + 2, t1))
    a('v_lshrrev_b32 v%d, 1, v%d' % (tmp + 3, t0))
    if NT % 2:
        a('v_cmp_gt_u32 vcc, %d, v%d' % (NT - 1, tmp + 3))
        a('v_cndmask_b32 v%d, 0, v%d, vcc' % (tmp + 2, tmp + 2))
    a('v_xor_b32 v%d, v%d, v%d' % (tmp + 2, tmp + 2, tmp + 3))
    a('v_lshlrev_b32 v%d, 5, v%d' % (tmp + 2, tmp + 2))
    a('v_and_b32 v%d, 1, v%d' % (tmp + 3, t0))
    a('v_lshlrev_b32 v%d, 4, v%d' % (tmp + 3, tmp + 3))
    a('v_mul_u32_u24 v%d, %d, v%d' % (t1, RS, t1))
    a('v_add3_u32 v%d, v%d, v%d, v%d' % (t1, t1, tmp + 2, tmp + 3))
    return rounds

def w_stage_write(k, rounds, NT, R, ldsbase, addr_reg, extra, pending_after, src=WST):
    a = k.a
    RS = 32 * NT
    if ldsbase:
        a('v_add_u32 v%d, 0x%x, v%d' % (addr_reg, ldsbase, addr_reg))
    db = DsBase(a, addr_reg, extra)
    db.prep((rounds - 1) * R * RS)
    for i in range(rounds):
        a('s_waitcnt vmcnt(%d)' % min(63, rounds - 1 - i + pending_after))
        r, o = db.at(i * R * RS)
        a('ds_write_b128 %s, %s offset:%d' % (r, vr(src + 4 * i), o))

def act_issue(k, srd, rowbytes, nsteps, tmp, dst=ACT, kofs=0):
    a = k.a
    a('s_mov_b32 s10, %d' % rowbytes)
    a('v_mul_lo_u32 v%d, v7, s10' % tmp)
    a('v_lshl_add_u32 v%d, v3, 4, v%d' % (tmp, tmp))
    for t in range(nsteps):
        a('buffer_load_dwordx4 %s, v%d, s[%d:%d], 0 offen offset:%d' % (vr(dst + 4 * t), tmp, srd, srd + 3, kofs + 64 * t))

def allreduce_g(a, x, t, op):
    a('v_mov_b32 v%d, v%d' % (t, x))
    a('v_permlane16_swap_b32 v%d, v%d' % (x, t))
    a('%s v%d, v%d, v%d' % (op, x, x, t))
    a('v_mov_b32 v%d, v%d' % (t, x))
    a('v_permlane32_swap_b32 v%d, v%d' % (x, t))
    a('%s v%d, v%d, v%d' % (op, x, x, t))

def layernorm(k, mode, tmp, stats_out=None):
    a = k.a
    s0, s1, q0, q1, one = tmp, tmp + 1, tmp + 2, tmp + 3, tmp + 4
    a('v_mov_b32 v%d, 0x3f803f80' % one)
    for r in (s0, s1, q0, q1): a('v_mov_b32 v%d, 0' % r)
    for i in range(56):
        x = ACT + i
        a('v_dot2_f32_bf16 v%d, v%d, v%d, v%d' % ((s0, s1)[i & 1], x, one, (s0, s1)[i & 1]))
        a('v_dot2_f32_bf16 v%d, v%d, v%d, v%d' % ((q0, q1)[i & 1], x, x, (q0, q1)[i & 1]))
    a('v_add_f32 v%d, v%d, v%d' % (s0, s0, s1))
    a('v_add_f32 v%d, v%d, v%d' % (q0, q0, q1))
    allreduce_g(a, s0, tmp + 5, 'v_add_f32')
    allreduce_g(a, q0, tmp + 5, 'v_add_f32')
    a('v_mul_f32 v%d, %s, v%d' % (s0, f32hex(1.0 / D), s0))
    a('v_mul_f32 v%d, %s, v%d' % (q0, f32hex(1.0 / D), q0))
    a('v_fma_f32 v%d, -v%d, v%d, v%d' % (q0, s0, s0, q0))
    a('v_max_f32 v%d, 0, v%d' % (q0, q0))
    a('v_add_f32 v%d, %s, v%d' % (s1, f32hex(1e-5), q0))
    a('v_rsq_f32 v%d, v%d' % (s1, s1))
    sc = s1
    if mode == 2:
        a('v_mul_f32 v%d, v%d, v%d' % (q1, s1, s1))
        a('v_mul_f32 v%d, v%d, v%d' % (q1, q1, q0))
        a('v_add_f32 v%d, %s, v%d' % (q1, f32hex(1e-5), q1))
        a('v_rsq_f32 v%d, v%d' % (q1, q1))
        a('v_mul_f32 v%d, v%d, v%d' % (q1, q1, s1))
        sc = q1
    p = tmp + 6
    assert p % 2 == 0
    a('v_mov_b32 v%d, v%d' % (p, sc)); a('v_mov_b32 v%d, v%d' % (p + 1, sc))
    a('v_mul_f32 v%d, v%d, v%d' % (p + 2, s0, sc)); a('v_sub_f32 v%d, 0, v%d' % (p + 2, p + 2)); a('v_mov_b32 v%d, v%d' % (p + 3, p + 2))
    u = tmp + 10
    for i in range(56):
        x = ACT + i
        uu = u + 2 * (i & 1)
        a('v_lshlrev_b32 v%d, 16, v%d' % (uu, x))
        a('v_and_b32 v%d, 0xffff0000, v%d' % (uu + 1, x))
        a('v_pk_fma_f32 v[%d:%d], v[%d:%d], v[%d:%d], v[%d:%d]' % (uu, uu + 1, uu, uu + 1, p, p + 1, p + 2, p + 3))
        a('v_cvt_pk_bf16_f32 v%d, v%d, v%d' % (x, uu, uu + 1))

def gemm_setup_addr(k, NT, ldsbase, tmp, extra_e, extra_o, K, plain=None):
    a = k.a
    RS = 32 * NT
    a('v_lshl_add_u32 v%d, v3, 3, v4' % tmp)
    a('v_mul_u32_u24 v%d, %d, v%d' % (tmp, RS, tmp))
    a('v_lshl_add_u32 v%d, v5, 3, v%d' % (tmp, tmp))
    if ldsbase: a('v_add_u32 v%d, 0x%x, v%d' % (tmp, ldsbase, tmp))
    dp = None
    if plain is not None:
        a('v_mov_b32 v%d, v%d' % (plain[0], tmp))
        dp = DsBase(a, plain[0], plain[1:]); dp.prep(K * RS)
    a('v_and_b32 v%d, 1, v3' % (tmp + 1))
    a('v_lshlrev_b32 v%d, 5, v%d' % (tmp + 1, tmp + 1))
    a('v_sub_u32 v%d, v%d, v%d' % (tmp + 2, tmp, tmp + 1))
    a('v_add_u32 v%d, v%d, v%d' % (tmp, tmp, tmp + 1))
    a('v_mov_b32 v%d, v%d' % (tmp + 1, tmp + 2))
    de = DsBase(a, tmp, extra_e); do = DsBase(a, tmp + 1, extra_o)
    de.prep(K * RS); do.prep(K * RS)
    de.plain = dp
    return de, do

def gemm_reads(a, de, do, NT, t, fr):
    RS = 32 * NT
    for T in range(NT):
        for h in range(2):
            b = de if T % 2 == 0 else do
            if NT % 2 and T == NT - 1: b = de.plain
            r, o = b.at((32 * t + 4 * h) * RS + 32 * T)
            a('ds_read_b64_tr_b16 v[%d:%d], %s offset:%d' % (fr + 4 * T + 2 * h, fr + 4 * T + 2 * h + 1, r, o))

def gemm_loop(k, de, do, NT, steps, act=ACT, kstep0=0, acc=ACC, frg=FRG, zero=True, pre_issued=False, next_prefetch=None):
    a = k.a
    fsz = 4 * NT
    if zero:
        for i in range(4 * NT): a('v_mov_b32 v%d, 0' % (acc + i))
    if not pre_issued:
        gemm_reads(a, de, do, NT, kstep0, frg)
    for t in range(steps):
        cur = frg + fsz * (t & 1); nxt = frg + fsz * ((t + 1) & 1)
        if t + 1 < steps:
            gemm_reads(a, de, do, NT, kstep0 + t + 1, nxt)
            a('s_waitcnt lgkmcnt(%d)' % min(15, 2 * NT))
        else:
            a('s_waitcnt lgkmcnt(0)')
        for T in range(NT):
            a('v_mfma_f32_16x16x32_bf16 %s, %s, %s, %s' % (vr(acc + 4 * T), vr(cur + 4 * T), vr(act + 4 * t), vr(acc + 4 * T)))

def gelu(a, x, t):
    ca = -2 * LOG2E * 0.7978845608028654
    cb = ca * 0.044715
    a('v_mul_f32 v%d, v%d, v%d' % (t, x, x))
    a('v_mov_b32 v%d, %s' % (t + 1, f32hex(ca)))
    a('v_fmac_f32 v%d, %s, v%d' % (t + 1, f32hex(cb), t))
    a('v_mul_f32 v%d, v%d, v%d' % (t, t + 1, x))
    a('v_exp_f32 v%d, v%d' % (t, t))
    a('v_add_f32 v%d, 1.0, v%d' % (t, t))
    a('v_rcp_f32 v%d, v%d' % (t, t))
    a('v_mul_f32 v%d, v%d, v%d' % (x, x, t))

def unpack4(a, src, dst):
    a('v_lshlrev_b32 v%d, 16, v%d' % (dst, src))
    a('v_and_b32 v%d, 0xffff0000, v%d' % (dst + 1, src))
    a('v_lshlrev_b32 v%d, 16, v%d' % (dst + 2, src + 1))
    a('v_and_b32 v%d, 0xffff0000, v%d' % (dst + 3, src + 1))

def out_addr28(k, reg, rowbytes=896, colbytes=56):
    a = k.a
    a('s_mov_b32 s10, %d' % rowbytes)
    a('v_mul_lo_u32 v%d, v7, s10' % reg)
    a('s_mul_i32 s10, s4, %d' % colbytes)
    a('v_lshlrev_b32 v%d, 3, v3' % (reg + 1))
    a('v_add3_u32 v%d, v%d, v%d, s10' % (reg, reg, reg + 1))

def store28(a, srd, addr, pk):
    a('buffer_store_dwordx2 v[%d:%d], v%d, s[%d:%d], 0 offen' % (pk, pk + 1, addr, srd, srd + 3))
    a('s_mov_b32 exec_hi, 0x0000ffff')
    a('buffer_store_dwordx2 v[%d:%d], v%d, s[%d:%d], 0 offen offset:32' % (pk + 2, pk + 3, addr, srd, srd + 3))
    a('s_mov_b32 exec_hi, -1')

def small_gemm_kernel(name, L, kind):
    k = Kern(name, 28672)
    a = k.a
    k.begin()
    wptr = {'wo': 'wo', 'w1': 'w1', 'w2': 'w2'}[kind]
    k.srd(40, wptr, 0, D * D * 2)
    if kind == 'wo':
        k.srd(44, 'ws', wsoff(L, 'O'), SZ_X)
        if L == 0: k.srd(48, 'x', 0, SZ_X)
        else: k.srd(48, 'ws', wsoff(0, 'X2'), SZ_X)
        k.srd(52, 'ws', wsoff(L, 'XP'), SZ_X)
    elif kind == 'w1':
        k.srd(44, 'ws', wsoff(L, 'XP'), SZ_X)
        k.srd(52, 'ws', wsoff(L, 'HH'), SZ_X)
        k.srd(56, 'ws', wsoff(L, 'STATS'), SZ_STATS)
    else:
        k.srd(44, 'ws', wsoff(L, 'HH'), SZ_X)
        k.srd(48, 'ws', wsoff(L, 'XP'), SZ_X)
        k.srd(52, 'ws', wsoff(L, 'X1'), SZ_X)
        k.srd(56, 'ws', wsoff(L, 'STATS'), SZ_STATS)
    rounds = w_stage_issue(k, 40, D * 2, D, 2, 112, [(0, 56, 4)], 8)
    npend = 14
    if kind != 'w2':
        act_issue(k, 44, D * 2, 14, 12)
    else:
        a('s_mov_b32 s10, %d' % (D * 2))
        a('v_mul_lo_u32 v12, v7, s10')
        a('v_lshl_add_u32 v12, v3, 4, v12')
        sh = [-1, 1, -2, 2]
        for q in range(4):
            a('v_add_u32 v%d, %d, v12' % (MISC + q, sh[q] * D * 2))
        a('v_cmp_gt_u32 vcc, 2, v3')
        a('v_cndmask_b32 v%d, v%d, v%d, vcc' % (MISC + 4, MISC + 1, MISC + 0))
        a('v_cndmask_b32 v%d, v%d, v%d, vcc' % (MISC + 5, MISC + 3, MISC + 2))
        for t in range(14):
            if t == 3: r = MISC + 4
            elif t == 10: r = MISC + 5
            else: r = MISC + (32 * t) // 112
            a('buffer_load_dwordx4 %s, v%d, s[44:47], 0 offen offset:%d' % (vr(ACT + 4 * t), r, 64 * t))
    out_addr28(k, 13)
    RES = MISC + 8
    if kind in ('wo', 'w2'):
        a('buffer_load_dwordx2 v[%d:%d], v13, s[48:51], 0 offen' % (RES, RES + 1))
        a('buffer_load_dwordx2 v[%d:%d], v13, s[48:51], 0 offen offset:32' % (RES + 2, RES + 3))
        npend += 2
    if kind == 'w2':
        a('v_lshlrev_b32 v14, 3, v7')
        a('buffer_load_dwordx2 v[%d:%d], v14, s[56:59], 0 offen' % (RES + 4, RES + 5))
        npend += 1
    w_stage_write(k, rounds, 2, 112, 0, 9, [], npend)
    a('s_waitcnt vmcnt(%d)' % (npend - 14))
    if kind == 'w1':
        layernorm(k, 2, MISC + 16)
        a('s_cmp_lg_u32 s4, 0')
        a('s_cbranch_scc1 L_nostat_%s' % name)
        a('v_lshlrev_b32 v14, 3, v7')
        a('s_mov_b64 exec, 0xffff')
        a('buffer_store_dwordx2 v[%d:%d], v14, s[56:59], 0 offen' % (MISC + 16, MISC + 17))
        a('s_mov_b64 exec, -1')
        a.label('L_nostat_%s' % name)
    de, do = gemm_setup_addr(k, 2, 0, 10, [], [], D)
    a('s_waitcnt lgkmcnt(0)')
    a('s_barrier')
    gemm_loop(k, de, do, 2, 14)
    T0 = MISC + 16
    a('s_waitcnt vmcnt(0)')
    if kind == 'wo':
        unpack4(a, RES, T0); unpack4(a, RES + 2, T0 + 4)
        for i in range(8): a('v_add_f32 v%d, v%d, v%d' % (ACC + i, ACC + i, T0 + i))
    elif kind == 'w1':
        for i in range(8): gelu(a, ACC + i, T0 + 2 * (i & 3))
    else:
        unpack4(a, RES, T0); unpack4(a, RES + 2, T0 + 4)
        for i in range(8):
            a('v_sub_f32 v%d, v%d, v%d' % (T0 + i, T0 + i, RES + 4))
            a('v_fmac_f32 v%d, v%d, v%d' % (ACC + i, T0 + i, RES + 5))
    for i in range(4):
        a('v_cvt_pk_bf16_f32 v%d, v%d, v%d' % (T0 + 8 + i, ACC + 2 * i, ACC + 2 * i + 1))
    store28(a, 52, 13, T0 + 8)
    k.end()
    return k

def w3_kernel(name, L):
    NT = 7
    k = Kern(name, D * 32 * NT)
    a = k.a
    k.begin()
    k.srd(40, 'w3', 0, D * F * 2)
    k.srd(44, 'ws', wsoff(L, 'X1'), SZ_X)
    k.srd(52, 'ws', wsoff(L, 'G'), SZ_G)
    rounds = w_stage_issue(k, 40, F * 2, D, NT, 32, [(0, 224, 14)], 8)
    act_issue(k, 44, D * 2, 14, 12)
    w_stage_write(k, rounds, NT, 32, 0, 9, [MISC], 14)
    a('s_waitcnt vmcnt(0)')
    layernorm(k, 1, MISC + 16)
    de, do = gemm_setup_addr(k, NT, 0, 10, [MISC + 1], [MISC + 2], D, plain=[MISC + 3, MISC + 4])
    out_addr28(k, 13, F * 2, 224)
    a('s_waitcnt lgkmcnt(0)')
    a('s_barrier')
    gemm_loop(k, de, do, NT, 14)
    T0 = MISC + 16
    for T in range(NT):
        for i in range(4): gelu(a, ACC + 4 * T + i, T0 + 2 * i)
        a('v_cvt_pk_bf16_f32 v%d, v%d, v%d' % (T0 + 8 + 2 * (T & 1), ACC + 4 * T, ACC + 4 * T + 1))
        a('v_cvt_pk_bf16_f32 v%d, v%d, v%d' % (T0 + 9 + 2 * (T & 1), ACC + 4 * T + 2, ACC + 4 * T + 3))
        a('buffer_store_dwordx2 v[%d:%d], v13, s[52:55], 0 offen offset:%d' % (T0 + 8 + 2 * (T & 1), T0 + 9 + 2 * (T & 1), 32 * T))
    k.end()
    return k

def w4_kernel(name, L):
    NT = 2
    k = Kern(name, F * 64)
    a = k.a
    k.begin()
    k.srd(40, 'w4', 0, D * F * 2)
    k.srd(44, 'ws', wsoff(L, 'G'), SZ_G)
    k.srd(48, 'ws', wsoff(L, 'XP'), SZ_X)
    k.srd(56, 'ws', wsoff(L, 'X1'), SZ_X)
    if L == 0: k.srd(52, 'ws', wsoff(0, 'X2'), SZ_X)
    else: k.srd(52, 'out', 0, SZ_X)
    WS4 = 128
    FR4 = 184; AC4 = 200
    rounds = w_stage_issue(k, 40, D * 2, F, NT, 128, [(0, 56, 4)], 8, dst=WS4)
    a('s_mov_b32 s10, %d' % (F * 2))
    a('v_mul_lo_u32 v15, v7, s10')
    a('v_lshl_add_u32 v15, v3, 4, v15')
    def issue_chunk(ch):
        dst = ACT + 56 * (ch & 1)
        for t in range(14):
            a('buffer_load_dwordx4 %s, v15, s[44:47], 0 offen offset:%d' % (vr(dst + 4 * t), ch * 896 + 64 * t))
    issue_chunk(0); issue_chunk(1)
    out_addr28(k, 13)
    RES = MISC + 8
    w_stage_write(k, rounds, NT, 128, 0, 9, [MISC], 28, src=WS4)
    de, do = gemm_setup_addr(k, NT, 0, 10, [MISC + 1], [MISC + 2], F)
    a('s_waitcnt lgkmcnt(0)')
    a('s_barrier')
    for ch in range(4):
        a('s_waitcnt vmcnt(%d)' % (14 if ch < 3 else 4))
        gemm_loop(k, de, do, NT, 14, act=ACT + 56 * (ch & 1), kstep0=14 * ch, acc=AC4, frg=FR4, zero=(ch == 0))
        if ch + 2 < 4:
            issue_chunk(ch + 2)
        if ch == 1:
            pass
        if ch == 2:
            a('buffer_load_dwordx2 v[%d:%d], v13, s[48:51], 0 offen' % (RES, RES + 1))
            a('buffer_load_dwordx2 v[%d:%d], v13, s[48:51], 0 offen offset:32' % (RES + 2, RES + 3))
            a('buffer_load_dwordx2 v[%d:%d], v13, s[56:59], 0 offen' % (RES + 4, RES + 5))
            a('buffer_load_dwordx2 v[%d:%d], v13, s[56:59], 0 offen offset:32' % (RES + 6, RES + 7))
    T0 = MISC + 16
    a('s_waitcnt vmcnt(0)')
    unpack4(a, RES, T0); unpack4(a, RES + 2, T0 + 4)
    for i in range(8): a('v_add_f32 v%d, v%d, v%d' % (AC4 + i, AC4 + i, T0 + i))
    unpack4(a, RES + 4, T0); unpack4(a, RES + 6, T0 + 4)
    for i in range(8): a('v_add_f32 v%d, v%d, v%d' % (AC4 + i, AC4 + i, T0 + i))
    for i in range(4):
        a('v_cvt_pk_bf16_f32 v%d, v%d, v%d' % (T0 + 8 + i, AC4 + 2 * i, AC4 + 2 * i + 1))
    store28(a, 52, 13, T0 + 8)
    k.end()
    return k

LDS_WPHI = 448 * 192
LDS_PHIK = LDS_WPHI + 2048
LDS_VV = LDS_PHIK + 16384
LDS_S1 = LDS_VV + 8192

def softmax_pair(k, p, outp, tmp):
    a = k.a
    mx, mn, t, sp, sm = tmp, tmp + 1, tmp + 2, tmp + 3, tmp + 4
    em = tmp + 6
    for i in range(4):
        a('v_cndmask_b32 v%d, v%d, v%d, s[60:61]' % (p + 4 + i, p + 4 + i, p))
    a('v_max3_f32 v%d, v%d, v%d, v%d' % (mx, p, p + 1, p + 2))
    a('v_max3_f32 v%d, v%d, v%d, v%d' % (mx, mx, p + 3, p + 4))
    a('v_max3_f32 v%d, v%d, v%d, v%d' % (mx, mx, p + 5, p + 6))
    a('v_max_f32 v%d, v%d, v%d' % (mx, mx, p + 7))
    a('v_min3_f32 v%d, v%d, v%d, v%d' % (mn, p, p + 1, p + 2))
    a('v_min3_f32 v%d, v%d, v%d, v%d' % (mn, mn, p + 3, p + 4))
    a('v_min3_f32 v%d, v%d, v%d, v%d' % (mn, mn, p + 5, p + 6))
    a('v_min_f32 v%d, v%d, v%d' % (mn, mn, p + 7))
    allreduce_g(a, mx, t, 'v_max_f32')
    allreduce_g(a, mn, t, 'v_min_f32')
    a('v_mov_b32 v%d, %s' % (t, f32hex(LOG2E)))
    for i in range(8):
        a('v_sub_f32 v%d, v%d, v%d' % (em + i, mn, p + i))
        a('v_sub_f32 v%d, v%d, v%d' % (p + i, p + i, mx))
        a('v_mul_f32 v%d, v%d, v%d' % (em + i, em + i, t))
        a('v_mul_f32 v%d, v%d, v%d' % (p + i, p + i, t))
        a('v_exp_f32 v%d, v%d' % (em + i, em + i))
        a('v_exp_f32 v%d, v%d' % (p + i, p + i))
    for i in range(4, 8):
        a('v_cndmask_b32 v%d, v%d, 0, s[60:61]' % (p + i, p + i))
        a('v_cndmask_b32 v%d, v%d, 0, s[60:61]' % (em + i, em + i))
    a('v_add_f32 v%d, v%d, v%d' % (sp, p, p + 1)); a('v_add_f32 v%d, v%d, v%d' % (sm, em, em + 1))
    for i in range(2, 8):
        a('v_add_f32 v%d, v%d, v%d' % (sp, sp, p + i)); a('v_add_f32 v%d, v%d, v%d' % (sm, sm, em + i))
    allreduce_g(a, sp, t, 'v_add_f32')
    allreduce_g(a, sm, t, 'v_add_f32')
    a('v_rcp_f32 v%d, v%d' % (sp, sp)); a('v_rcp_f32 v%d, v%d' % (sm, sm))
    for i in range(8):
        a('v_mul_f32 v%d, v%d, v%d' % (p + i, p + i, sp))
        a('v_mul_f32 v%d, v%d, v%d' % (em + i, em + i, sm))
    for i in range(4):
        a('v_cvt_pk_bf16_f32 v%d, v%d, v%d' % (outp + i, p + 2 * i, p + 2 * i + 1))
        a('v_cvt_pk_bf16_f32 v%d, v%d, v%d' % (outp + 4 + i, em + 2 * i, em + 2 * i + 1))

def s1_kernel(name, L):
    NT = 6
    k = Kern(name, LDS_S1)
    a = k.a
    k.begin()
    k.srd(40, 'wqkv', 0, D * 3 * D * 2)
    if L == 0: k.srd(44, 'x', 0, SZ_X)
    else: k.srd(44, 'ws', wsoff(0, 'X2'), SZ_X)
    k.srd(48, 'wphi', 0, H * DH * DH * 2)
    k.srd(52, 'ws', wsoff(L, 'KVP'), SZ_KVP)
    k.srd(56, 'ws', wsoff(L, 'PHIQ'), SZ_PHIQ)
    a('s_mov_b32 s60, 0'); a('s_mov_b32 s61, 0xffff0000')
    a('v_and_b32 v8, 255, v0')
    a('v_lshrrev_b32 v9, 3, v8')
    a('v_and_b32 v10, 7, v8')
    a('v_mul_u32_u24 v11, 56, v9')
    a('v_lshl_add_u32 v11, v10, 3, v11')
    a('s_mul_i32 s10, s4, 1568')
    a('v_add_u32 v11, s10, v11')
    a('v_cmp_gt_u32 vcc, 28, v9')
    a('v_cmp_gt_u32 s[62:63], 7, v10')
    a('s_and_b64 vcc, vcc, s[62:63]')
    a('v_mov_b32 v12, 0x7fffffff')
    a('v_cndmask_b32 v11, v12, v11, vcc')
    a('buffer_load_dwordx2 v[%d:%d], v11, s[48:51], 0 offen' % (MISC + 4, MISC + 5))
    a('v_lshlrev_b32 v%d, 3, v8' % (MISC + 6))
    rounds = w_stage_issue(k, 40, 3 * D * 2, D, NT, 32, [(0, 56, 4), (896, 56, 4), (1792, 56, 4)], 8)
    act_issue(k, 44, D * 2, 14, 12)
    a('s_waitcnt vmcnt(%d)' % (rounds + 14))
    a('ds_write_b64 v%d, v[%d:%d] offset:%d' % (MISC + 6, MISC + 4, MISC + 5, 0)) if False else None
    a('v_add_u32 v%d, 0x%x, v%d' % (MISC + 6, LDS_WPHI, MISC + 6))
    a('ds_write_b64 v%d, v[%d:%d]' % (MISC + 6, MISC + 4, MISC + 5))
    w_stage_write(k, rounds, NT, 32, 0, 9, [MISC], 14)
    a('s_waitcnt vmcnt(0)')
    layernorm(k, 1, MISC + 16)
    de, do = gemm_setup_addr(k, NT, 0, 10, [MISC + 1], [MISC + 2], D)
    a('s_waitcnt lgkmcnt(0)')
    a('s_barrier')
    gemm_loop(k, de, do, NT, 14)
    WA = 16
    QB = 24; KB = 28
    PQ = 32; PK = 40
    PHQ = 48; PHK = 56
    VP = 64
    TMP = 72
    a('v_lshl_add_u32 v8, v3, 2, v4')
    a('v_lshlrev_b32 v8, 6, v8')
    a('v_lshl_add_u32 v8, v5, 3, v8')
    a('v_add_u32 v8, 0x%x, v8' % LDS_WPHI)
    for Fi in range(2):
        for h in range(2):
            a('ds_read_b64_tr_b16 v[%d:%d], v8 offset:%d' % (WA + 4 * Fi + 2 * h, WA + 4 * Fi + 2 * h + 1, h * 1024 + Fi * 32))
    for i in range(4):
        a('v_cvt_pk_bf16_f32 v%d, v%d, v%d' % (QB + i, ACC + 2 * i, ACC + 2 * i + 1))
        a('v_cvt_pk_bf16_f32 v%d, v%d, v%d' % (KB + i, ACC + 8 + 2 * i, ACC + 8 + 2 * i + 1))
    a('v_cndmask_b32 v%d, v%d, 1.0, s[60:61]' % (ACC + 20, ACC + 20))
    for i in range(1, 4):
        a('v_cndmask_b32 v%d, v%d, 0, s[60:61]' % (ACC + 20 + i, ACC + 20 + i))
    for i in range(4):
        a('v_cvt_pk_bf16_f32 v%d, v%d, v%d' % (VP + i, ACC + 16 + 2 * i, ACC + 16 + 2 * i + 1))
    for i in range(16): a('v_mov_b32 v%d, 0' % (PQ + i))
    a('s_waitcnt lgkmcnt(0)')
    for Fi in range(2):
        a('v_mfma_f32_16x16x32_bf16 %s, %s, %s, %s' % (vr(PQ + 4 * Fi), vr(WA + 4 * Fi), vr(QB), vr(PQ + 4 * Fi)))
        a('v_mfma_f32_16x16x32_bf16 %s, %s, %s, %s' % (vr(PK + 4 * Fi), vr(WA + 4 * Fi), vr(KB), vr(PK + 4 * Fi)))
    softmax_pair(k, PK, PHK, TMP)
    a('s_lshl_b32 s10, s5, 4')
    a('v_add_u32 v9, s10, v2')
    a('v_lshlrev_b32 v10, 7, v9')
    a('v_lshl_add_u32 v10, v3, 4, v10')
    a('v_add_u32 v10, 0x%x, v10' % LDS_PHIK)
    a('ds_write_b128 v10, %s' % vr(PHK))
    a('ds_write_b128 v10, %s offset:64' % vr(PHK + 4))
    a('v_lshlrev_b32 v10, 6, v9')
    a('v_lshl_add_u32 v10, v3, 4, v10')
    a('v_add_u32 v10, 0x%x, v10' % LDS_VV)
    a('ds_write_b128 v10, %s' % vr(VP))
    softmax_pair(k, PQ, PHQ, TMP)
    a('v_lshlrev_b32 v10, 11, v7')
    a('s_lshl_b32 s10, s4, 7')
    a('v_lshlrev_b32 v11, 4, v3')
    a('v_add3_u32 v10, v10, v11, s10')
    a('buffer_store_dwordx4 %s, v10, s[56:59], 0 offen' % vr(PHQ))
    a('buffer_store_dwordx4 %s, v10, s[56:59], 0 offen offset:64' % vr(PHQ + 4))
    a('s_waitcnt lgkmcnt(0)')
    a('s_barrier')
    a('v_lshl_add_u32 v8, v3, 3, v4')
    a('s_and_b32 s10, s5, 1')
    a('s_lshl_b32 s10, s10, 5')
    a('s_add_u32 s10, s10, 0x%x' % LDS_VV)
    a('v_lshlrev_b32 v9, 6, v8')
    a('v_lshl_add_u32 v9, v5, 3, v9')
    a('v_add_u32 v9, s10, v9')
    a('s_lshr_b32 s10, s5, 1')
    a('s_lshl_b32 s10, s10, 5')
    a('s_add_u32 s10, s10, 0x%x' % LDS_PHIK)
    a('v_lshlrev_b32 v10, 7, v8')
    a('v_lshl_add_u32 v10, v5, 3, v10')
    a('v_add_u32 v10, s10, v10')
    KA = 72; KBf = 88; KD = 104
    for t in range(4):
        for h in range(2):
            a('ds_read_b64_tr_b16 v[%d:%d], v9 offset:%d' % (KA + 4 * t + 2 * h, KA + 4 * t + 2 * h + 1, (32 * t + 4 * h) * 64))
            a('ds_read_b64_tr_b16 v[%d:%d], v10 offset:%d' % (KBf + 4 * t + 2 * h, KBf + 4 * t + 2 * h + 1, (32 * t + 4 * h) * 128))
    for i in range(4): a('v_mov_b32 v%d, 0' % (KD + i))
    a('s_waitcnt lgkmcnt(0)')
    for t in range(4):
        a('v_mfma_f32_16x16x32_bf16 %s, %s, %s, %s' % (vr(KD), vr(KA + 4 * t), vr(KBf + 4 * t), vr(KD)))
    a('s_lshl_b32 s10, s3, 4'); a('s_add_u32 s10, s10, s4'); a('s_lshl_b32 s10, s10, 13')
    a('s_and_b32 s11, s5, 1'); a('s_lshl_b32 s11, s11, 12'); a('s_add_u32 s10, s10, s11')
    a('s_lshr_b32 s11, s5, 1'); a('s_lshl_b32 s11, s11, 6'); a('s_add_u32 s10, s10, s11')
    a('v_lshlrev_b32 v8, 10, v3')
    a('v_lshl_add_u32 v8, v2, 2, v8')
    a('v_add_u32 v8, s10, v8')
    for i in range(4):
        a('buffer_store_dword v%d, v8, s[52:55], 0 offen offset:%d' % (KD + i, 256 * i))
    k.end()
    return k

def s2a_kernel(name, L):
    k = Kern(name, 4096)
    a = k.a
    k.begin()
    k.srd(40, 'ws', wsoff(L, 'KVP'), SZ_KVP)
    k.srd(44, 'ws', wsoff(L, 'PHIQ'), SZ_PHIQ)
    k.srd(52, 'ws', wsoff(L, 'O'), SZ_X)
    a('s_mov_b32 s60, 0'); a('s_mov_b32 s61, 0xffff0000')
    a('s_lshl_b32 s10, s4, 13')
    a('v_lshlrev_b32 v8, 4, v0')
    a('v_add_u32 v8, s10, v8')
    PT = 72
    for cc in range(16):
        a('s_mov_b32 s10, 0x%x' % (cc * 16 * 8192))
        a('buffer_load_dwordx4 %s, v8, s[40:43], s10 offen' % vr(PT + 4 * cc))
    a('v_lshlrev_b32 v10, 11, v7')
    a('s_lshl_b32 s10, s4, 7')
    a('v_lshlrev_b32 v11, 4, v3')
    a('v_add3_u32 v10, v10, v11, s10')
    PB = 16
    a('buffer_load_dwordx4 %s, v10, s[44:47], 0 offen' % vr(PB))
    a('buffer_load_dwordx4 %s, v10, s[44:47], 0 offen offset:64' % vr(PB + 4))
    for cc in range(1, 16):
        a('s_waitcnt vmcnt(%d)' % (15 - cc + 2))
        for i in range(4):
            a('v_add_f32 v%d, v%d, v%d' % (PT + i, PT + i, PT + 4 * cc + i))
    a('v_cvt_pk_bf16_f32 v%d, v%d, v%d' % (PT + 4, PT, PT + 1))
    a('v_cvt_pk_bf16_f32 v%d, v%d, v%d' % (PT + 5, PT + 2, PT + 3))
    a('v_lshlrev_b32 v9, 3, v0')
    a('ds_write_b64 v9, v[%d:%d]' % (PT + 4, PT + 5))
    a('s_waitcnt lgkmcnt(0)')
    a('s_barrier')
    a('v_lshlrev_b32 v9, 7, v2')
    a('v_lshl_add_u32 v9, v3, 4, v9')
    AF = 24; OD = 40
    for Tm in range(2):
        for u in range(2):
            a('ds_read_b128 %s, v9 offset:%d' % (vr(AF + 8 * Tm + 4 * u), Tm * 2048 + u * 64))
    for i in range(8): a('v_mov_b32 v%d, 0' % (OD + i))
    a('s_waitcnt vmcnt(0) lgkmcnt(0)')
    for u in range(2):
        for Tm in range(2):
            a('v_mfma_f32_16x16x32_bf16 %s, %s, %s, %s' % (vr(OD + 4 * Tm), vr(AF + 8 * Tm + 4 * u), vr(PB + 4 * u), vr(OD + 4 * Tm)))
    a('v_cndmask_b32 v48, 0, v%d, s[60:61]' % (OD + 4))
    allreduce_g(a, 48, 49, 'v_add_f32')
    a('v_add_f32 v48, %s, v48' % f32hex(1e-6))
    a('v_rcp_f32 v48, v48')
    for i in range(8): a('v_mul_f32 v%d, v%d, v48' % (OD + i, OD + i))
    for i in range(4): a('v_cvt_pk_bf16_f32 v%d, v%d, v%d' % (50 + i, OD + 2 * i, OD + 2 * i + 1))
    a('s_mov_b32 s10, 896')
    a('v_mul_lo_u32 v12, v7, s10')
    a('s_mul_i32 s10, s4, 56')
    a('v_and_b32 v13, 1, v3'); a('v_lshlrev_b32 v13, 5, v13')
    a('v_lshrrev_b32 v14, 1, v3'); a('v_lshlrev_b32 v14, 3, v14')
    a('v_add3_u32 v12, v12, v13, v14')
    a('v_add_u32 v12, s10, v12')
    a('buffer_store_dwordx2 v[50:51], v12, s[52:55], 0 offen')
    a('s_mov_b32 exec_hi, 0x0000ffff')
    a('buffer_store_dwordx2 v[52:53], v12, s[52:55], 0 offen offset:16')
    a('s_mov_b32 exec_hi, -1')
    k.end()
    return k

def build():
    ks = []
    for L in range(2):
        ks.append(s1_kernel('s1_l%d_kernel' % L, L))
        ks.append(s2a_kernel('s2a_l%d_kernel' % L, L))
        ks.append(small_gemm_kernel('s2b_l%d_kernel' % L, L, 'wo'))
        ks.append(small_gemm_kernel('s3_l%d_kernel' % L, L, 'w1'))
        ks.append(small_gemm_kernel('s4_l%d_kernel' % L, L, 'w2'))
        ks.append(w3_kernel('s5_l%d_kernel' % L, L))
        ks.append(w4_kernel('s6_l%d_kernel' % L, L))
    hdr = ''.join('; @launch kernel=%s grid=(256,1,1) block=(512,1,1) lds=%d\n' % (k.name, k.lds) for k in ks)
    txt = hdr + '.amdgcn_target "amdgcn-amd-amdhsa--gfx950"\n.text\n'
    for k in ks: txt += k.a.text()
    txt += '.section .rodata,"a"\n'
    for k in ks: txt += '.p2align 6\n' + k.desc()
    return txt

if __name__ == '__main__':
    out = sys.argv[1] if len(sys.argv) > 1 else 'interleave_layers__linear_kernel_hedgehog__mixer_s_mlp__prompt.s'
    open(out, 'w').write(build())
    print('written', out)
```

```python
import sys, os, struct
sys.path.insert(0, 'gen')
from asmlib import Asm

S, D, H, DH, F = 2048, 448, 16, 28, 1792
MB = 1 << 20
WOFF = dict(KVP=0, PHIQ=2 * MB, O=6 * MB, XP=8 * MB, HH=10 * MB, X1=12 * MB, STATS=14 * MB, G=16 * MB, X2=24 * MB)
SZ_X = S * D * 2
SZ_G = S * F * 2
SZ_KVP = 16 * 16 * 8192
SZ_STATS = S * 8
P = dict(x=16, wqkv=18, wphi=20, wo=22, bx=24, w1=26, w2=28, w3=30, w4=32, out=34, dbg=36, ws=38, lws=66, xsrc=68, xdst=70)
LOG2E = 1.4426950408889634
STAMPS = int(os.environ.get('STAMPS', '0'))
KNAME = 'interleave_layers__linear_kernel_hedgehog__mixer_s_mlp__prompt_kernel'

def f32hex(x):
    return '0x%08x' % struct.unpack('<I', struct.pack('<f', x))[0]
def vr(b, n=4):
    return 'v[%d:%d]' % (b, b + n - 1)

ACT = 16
WST = 72
FRG = 128
ACC = 184
MISC = 212
OFFS = 236
FAE = 243; FAO = 244
TMPA = 245
PHQ = 248
R0 = 0; R1 = 57344; R2 = 114688
LDS_TOTAL = 163840
S1_W = 0; S1_WPHI = 86016; S1_ATR = 88064
S1_PHIK = S1_ATR; S1_VV = S1_ATR + 16384
S2A_KV = 150000 // 16 * 16
CNT_PER_LAYER = 60

a = Asm()
nstamp = [0]
def stamp():
    if not STAMPS: return
    i = nstamp[0]
    a('s_waitcnt lgkmcnt(0)')
    a('s_memtime s[80:81]')
    a('s_waitcnt lgkmcnt(0)')
    a('v_mov_b32 v%d, s80' % TMPA)
    a('s_lshl_b32 s82, s2, 10')
    a('s_lshl_b32 s83, s64, 8')
    a('s_add_u32 s82, s82, s83')
    a('s_lshl_b32 s83, s5, 9')
    a('s_add_u32 s82, s82, s83')
    a('v_mov_b32 v%d, s82' % (TMPA + 1))
    a('s_cmp_gt_u32 s5, 1')
    a('s_cbranch_scc1 L_nost_%d' % i)
    a('s_mov_b64 exec, 1')
    a('buffer_store_dword v%d, v%d, s[84:87], 0 offen offset:%d' % (TMPA, TMPA + 1, 4 * (i % 64)))
    a('s_mov_b64 exec, -1')
    a.label('L_nost_%d' % i)
    nstamp[0] += 1

def srd(d, ptr, off, size):
    p = P[ptr]
    if off:
        a('s_add_u32 s%d, s%d, 0x%x' % (d, p, off))
        a('s_addc_u32 s%d, s%d, 0' % (d + 1, p + 1))
    else:
        a('s_mov_b32 s%d, s%d' % (d, p))
        a('s_mov_b32 s%d, s%d' % (d + 1, p + 1))
    a('s_mov_b32 s%d, 0x%x' % (d + 2, size))
    a('s_mov_b32 s%d, 0x00020000' % (d + 3))
def lsrd(d, name, size):
    srd(d, 'lws', WOFF[name], size)

def magic_div(d, maxv):
    for sh in range(8, 24):
        m = -(-(1 << sh) // d)
        if all((t * m) >> sh == t // d for t in range(maxv)) and m * maxv < (1 << 32) and m < (1 << 24):
            return m, sh
    raise ValueError

class DsBase:
    def __init__(self, reg, extra_regs):
        self.reg = reg; self.extra = list(extra_regs); self.made = {}
    def prep(self, maxoff):
        k = 1
        while maxoff >= k * 61440:
            r = self.extra[k - 1]
            a('v_add_u32 v%d, 0x%x, v%d' % (r, k * 61440, self.reg))
            self.made[k] = r
            k += 1
    def at(self, off):
        k = off // 61440
        r = self.reg if k == 0 else self.made[k]
        return 'v%d' % r, off - k * 61440

lblc = [0]
def newlbl(p):
    lblc[0] += 1
    return 'L_%s_%d' % (p, lblc[0])

FLAG_OFF = 56 * MB
def get_tag():
    l = newlbl('gt'); lp = newlbl('gtp')
    a('s_cmp_lg_u32 s5, 0')
    a('s_cbranch_scc1 %s' % l)
    a('s_cmp_lg_u32 s90, 0')
    a('s_cbranch_scc1 %s' % l)
    a('v_mov_b32 v8, 0')
    a('s_mov_b32 s15, 0')
    a.flush_hazards(4)
    a.label(lp)
    a('buffer_load_dwordx2 v[10:11], v8, s[76:79], 0 offen sc1')
    a('s_waitcnt vmcnt(0)')
    a('v_readfirstlane_b32 s90, v10')
    a('v_readfirstlane_b32 s91, v11')
    a('s_add_u32 s15, s15, 1')
    a('s_cmp_gt_u32 s15, 0x40000')
    a('s_cbranch_scc1 L_abort')
    a('s_cmp_lg_u32 s90, 0')
    a('s_cbranch_scc1 %s' % l)
    a('s_sleep 2')
    a('s_branch %s' % lp)
    a.label(l)

def flag_addr(stage, groups, slot_expr):
    pass

def signal(stage, groups, slot):
    a('s_waitcnt vmcnt(0) lgkmcnt(0)')
    a('s_barrier')
    l = newlbl('sig')
    a('s_cmp_lg_u32 s5, 0')
    a('s_cbranch_scc1 %s' % l)
    a('v_mov_b32 v8, %s' % groups[0])
    if len(groups) > 1:
        a('v_mov_b32 v9, %s' % groups[1])
        a('v_cmp_eq_u32 vcc, 1, v1')
        a('v_cndmask_b32 v8, v8, v9, vcc')
    a('s_lshl_b32 s10, s64, 3')
    a('s_add_u32 s10, s10, %d' % stage)
    a('s_lshl_b32 s10, s10, 12')
    a('s_lshl_b32 s11, %s, 3' % slot)
    a('s_add_u32 s10, s10, s11')
    a('v_lshlrev_b32 v8, 7, v8')
    a('v_add_u32 v8, s10, v8')
    a('v_mov_b32 v10, s90')
    a('v_mov_b32 v11, s91')
    a('s_mov_b64 exec, %d' % ((1 << len(groups)) - 1))
    a('buffer_store_dwordx2 v[10:11], v8, s[92:95], 0 offen sc1')
    a('s_mov_b64 exec, -1')
    a.label(l)

def wait_dep(stage, groups, nslots, prev_layer=False):
    l = newlbl('wd'); lp = newlbl('poll')
    a('s_cmp_lg_u32 s5, 0')
    a('s_cbranch_scc1 %s' % l)
    a('v_mov_b32 v8, %s' % groups[0])
    for i in range(1, len(groups)):
        a('v_mov_b32 v9, %s' % groups[i])
        a('v_cmp_eq_u32 vcc, %d, v3' % i)
        a('v_cndmask_b32 v8, v8, v9, vcc')
    a('s_lshl_b32 s10, s64, 3')
    a('s_add_u32 s10, s10, %d' % (stage - (8 if prev_layer else 0)))
    a('s_lshl_b32 s10, s10, 12')
    a('v_lshlrev_b32 v8, 7, v8')
    a('v_lshl_add_u32 v8, v2, 3, v8')
    a('v_add_u32 v8, s10, v8')
    msk = 0
    for i in range(len(groups)): msk |= ((1 << nslots) - 1) << (16 * i)
    a('s_mov_b32 exec_lo, 0x%x' % (msk & 0xffffffff))
    a('s_mov_b32 exec_hi, 0x%x' % (msk >> 32))
    a('s_mov_b32 s15, 0')
    a.flush_hazards(6)
    a.label(lp)
    a('buffer_load_dwordx2 v[10:11], v8, s[92:95], 0 offen sc1')
    a('s_waitcnt vmcnt(0)')
    a('v_cmp_ne_u64 vcc, s[90:91], v[10:11]')
    a('s_add_u32 s15, s15, 1')
    a('s_cmp_gt_u32 s15, 0x40000')
    a('s_cbranch_scc1 L_abort')
    a('s_cmp_eq_u64 vcc, 0')
    a.flush_hazards(3)
    a('s_cbranch_scc1 %s_done' % lp)
    a('s_sleep 1')
    a('s_branch %s' % lp)
    a.label('%s_done' % lp)
    a('s_mov_b64 exec, -1')
    a.label(l)
    a('s_barrier')

def w_stage_issue(srdn, wstride, K, NT, R, segs, tmp, dst=WST):
    CH = 2 * NT
    used = R * CH
    rounds = K // R
    m, sh = magic_div(CH, 512)
    t0, t1 = tmp, tmp + 1
    a('v_min_u32 v%d, %d, v0' % (t0, used - 1))
    a('v_mul_u32_u24 v%d, %d, v%d' % (t1, m, t0))
    a('v_lshrrev_b32 v%d, %d, v%d' % (t1, sh, t1))
    a('v_mul_u32_u24 v%d, %d, v%d' % (tmp + 2, CH, t1))
    a('v_sub_u32 v%d, v%d, v%d' % (t0, t0, tmp + 2))
    a('s_mov_b32 s10, %d' % wstride)
    a('v_mul_lo_u32 v%d, v%d, s10' % (tmp + 2, t1))
    if len(segs) == 1:
        imm, jmul, _ = segs[0]
        a('s_mul_i32 s10, s4, %d' % jmul)
        a('v_lshlrev_b32 v%d, 4, v%d' % (tmp + 3, t0))
        a('v_add3_u32 v%d, v%d, v%d, s10' % (tmp + 2, tmp + 2, tmp + 3))
    else:
        segstride = segs[1][0] - segs[0][0]
        jmul = segs[0][1]
        a('s_mul_i32 s10, s4, %d' % jmul)
        a('v_lshrrev_b32 v%d, 2, v%d' % (tmp + 3, t0))
        a('v_mul_u32_u24 v%d, %d, v%d' % (tmp + 3, segstride, tmp + 3))
        a('v_add3_u32 v%d, v%d, v%d, s10' % (tmp + 2, tmp + 2, tmp + 3))
        a('v_and_b32 v%d, 3, v%d' % (tmp + 3, t0))
        a('v_lshlrev_b32 v%d, 4, v%d' % (tmp + 3, tmp + 3))
        a('v_add_u32 v%d, v%d, v%d' % (tmp + 2, tmp + 2, tmp + 3))
    for i in range(rounds):
        a('s_mov_b32 s10, 0x%x' % (i * R * wstride))
        a('buffer_load_dwordx4 %s, v%d, s[%d:%d], s10 offen' % (vr(dst + 4 * i), tmp + 2, srdn, srdn + 3))
    RS = 32 * NT
    a('v_bfe_u32 v%d, v%d, 3, 1' % (tmp + 2, t1))
    a('v_lshrrev_b32 v%d, 1, v%d' % (tmp + 3, t0))
    if NT % 2:
        a('v_cmp_gt_u32 vcc, %d, v%d' % (NT - 1, tmp + 3))
        a('v_cndmask_b32 v%d, 0, v%d, vcc' % (tmp + 2, tmp + 2))
    a('v_xor_b32 v%d, v%d, v%d' % (tmp + 2, tmp + 2, tmp + 3))
    a('v_lshlrev_b32 v%d, 5, v%d' % (tmp + 2, tmp + 2))
    a('v_and_b32 v%d, 1, v%d' % (tmp + 3, t0))
    a('v_lshlrev_b32 v%d, 4, v%d' % (tmp + 3, tmp + 3))
    a('v_mul_u32_u24 v%d, %d, v%d' % (t1, RS, t1))
    a('v_add3_u32 v%d, v%d, v%d, v%d' % (t1, t1, tmp + 2, tmp + 3))
    return rounds

def w_stage_write(rounds, NT, R, ldsbase, addr_reg, extra, pending_after, src=WST):
    RS = 32 * NT
    if ldsbase:
        a('v_add_u32 v%d, 0x%x, v%d' % (addr_reg, ldsbase, addr_reg))
    db = DsBase(addr_reg, extra)
    db.prep((rounds - 1) * R * RS)
    for i in range(rounds):
        a('s_waitcnt vmcnt(%d)' % min(63, rounds - 1 - i + pending_after))
        r, o = db.at(i * R * RS)
        a('ds_write_b128 %s, %s offset:%d' % (r, vr(src + 4 * i), o))

def W_dma_generic(srdn, wstride, K, NT, segs, ldsbase):
    CH = 2 * NT
    NCH = K * CH
    ninstr = -(-NCH // 64)
    m, sh = magic_div(CH, ninstr * 64 + 512)
    if len(segs) == 1: a('s_mul_i32 s11, s4, %d' % segs[0][1])
    else: a('s_mul_i32 s11, s4, %d' % segs[0][1])
    a('s_lshl_b32 s12, s5, 10')
    a('s_add_u32 s12, s12, %d' % ldsbase)
    a('s_lshl_b32 s10, s5, 6')
    a('v_add_u32 v12, s10, v1')
    for i in range(-(-ninstr // 8)):
        lsk = None
        if i * 8 + 7 >= ninstr:
            lsk = newlbl('wdg')
            a('s_cmp_ge_u32 s5, %d' % (ninstr - i * 8))
            a('s_cbranch_scc1 %s' % lsk)
        a('v_add_u32 v8, %d, v12' % (i * 512))
        a('v_mul_u32_u24 v9, %d, v8' % m)
        a('v_lshrrev_b32 v9, %d, v9' % sh)
        a('v_mul_u32_u24 v10, %d, v9' % CH)
        a('v_sub_u32 v8, v8, v10')
        a('v_bfe_u32 v10, v9, 3, 1')
        a('v_lshrrev_b32 v11, 1, v8')
        if NT % 2:
            a('v_cmp_gt_u32 vcc, %d, v11' % (NT - 1))
            a('v_cndmask_b32 v10, 0, v10, vcc')
        a('v_lshlrev_b32 v10, 1, v10')
        a('v_xor_b32 v8, v8, v10')
        a('s_mov_b32 s10, %d' % wstride)
        a('v_mul_lo_u32 v9, v9, s10')
        if len(segs) == 1:
            a('v_lshl_add_u32 v9, v8, 4, v9')
        else:
            segstride = segs[1][0] - segs[0][0]
            a('v_lshrrev_b32 v10, 2, v8')
            a('v_mul_u32_u24 v10, %d, v10' % segstride)
            a('v_and_b32 v8, 3, v8')
            a('v_lshlrev_b32 v8, 4, v8')
            a('v_add3_u32 v9, v9, v10, v8')
        a('s_add_u32 m0, s12, %d' % (i * 8192))
        a('buffer_load_dwordx4 v9, s[%d:%d], s11 offen lds' % (srdn, srdn + 3))
        if lsk: a.label(lsk)

def allreduce_g(x, t, op):
    a('v_mov_b32 v%d, v%d' % (t, x))
    a('v_permlane16_swap_b32 v%d, v%d' % (x, t))
    a('%s v%d, v%d, v%d' % (op, x, x, t))
    a('v_mov_b32 v%d, v%d' % (t, x))
    a('v_permlane32_swap_b32 v%d, v%d' % (x, t))
    a('%s v%d, v%d, v%d' % (op, x, x, t))

def layernorm(mode, tmp):
    s0, s1, q0, q1, one = tmp, tmp + 1, tmp + 2, tmp + 3, tmp + 4
    a('v_mov_b32 v%d, 0x3f803f80' % one)
    for r in (s0, s1, q0, q1): a('v_mov_b32 v%d, 0' % r)
    for i in range(56):
        x = ACT + i
        a('v_dot2_f32_bf16 v%d, v%d, v%d, v%d' % ((s0, s1)[i & 1], x, one, (s0, s1)[i & 1]))
        a('v_dot2_f32_bf16 v%d, v%d, v%d, v%d' % ((q0, q1)[i & 1], x, x, (q0, q1)[i & 1]))
    a('v_add_f32 v%d, v%d, v%d' % (s0, s0, s1))
    a('v_add_f32 v%d, v%d, v%d' % (q0, q0, q1))
    allreduce_g(s0, tmp + 5, 'v_add_f32')
    allreduce_g(q0, tmp + 5, 'v_add_f32')
    a('v_mul_f32 v%d, %s, v%d' % (s0, f32hex(1.0 / D), s0))
    a('v_mul_f32 v%d, %s, v%d' % (q0, f32hex(1.0 / D), q0))
    a('v_fma_f32 v%d, -v%d, v%d, v%d' % (q0, s0, s0, q0))
    a('v_max_f32 v%d, 0, v%d' % (q0, q0))
    a('v_add_f32 v%d, %s, v%d' % (s1, f32hex(1e-5), q0))
    a('v_rsq_f32 v%d, v%d' % (s1, s1))
    sc = s1
    if mode == 2:
        a('v_mul_f32 v%d, v%d, v%d' % (q1, s1, s1))
        a('v_mul_f32 v%d, v%d, v%d' % (q1, q1, q0))
        a('v_add_f32 v%d, %s, v%d' % (q1, f32hex(1e-5), q1))
        a('v_rsq_f32 v%d, v%d' % (q1, q1))
        a('v_mul_f32 v%d, v%d, v%d' % (q1, q1, s1))
        sc = q1
    p = tmp + 6
    assert p % 2 == 0
    a('v_mov_b32 v%d, v%d' % (p, sc)); a('v_mov_b32 v%d, v%d' % (p + 1, sc))
    a('v_mul_f32 v%d, v%d, v%d' % (p + 2, s0, sc)); a('v_sub_f32 v%d, 0, v%d' % (p + 2, p + 2)); a('v_mov_b32 v%d, v%d' % (p + 3, p + 2))
    u = tmp + 10
    for i in range(56):
        x = ACT + i
        uu = u + 2 * (i & 1)
        a('v_lshlrev_b32 v%d, 16, v%d' % (uu, x))
        a('v_and_b32 v%d, 0xffff0000, v%d' % (uu + 1, x))
        a('v_pk_fma_f32 v[%d:%d], v[%d:%d], v[%d:%d], v[%d:%d]' % (uu, uu + 1, uu, uu + 1, p, p + 1, p + 2, p + 3))
        a('v_cvt_pk_bf16_f32 v%d, v%d, v%d' % (x, uu, uu + 1))

CS = 163328
ONES = 232
def ln_stats(mode, tmp):
    s0, s1, q0, q1 = tmp, tmp + 1, tmp + 2, tmp + 3
    for r in (s0, s1, q0, q1): a('v_mov_b32 v%d, 0' % r)
    for i in range(56):
        x = ACT + i
        a('v_dot2_f32_bf16 v%d, v%d, v%d, v%d' % ((s0, s1)[i & 1], x, ONES, (s0, s1)[i & 1]))
        a('v_dot2_f32_bf16 v%d, v%d, v%d, v%d' % ((q0, q1)[i & 1], x, x, (q0, q1)[i & 1]))
    a('v_add_f32 v%d, v%d, v%d' % (s0, s0, s1))
    a('v_add_f32 v%d, v%d, v%d' % (q0, q0, q1))
    allreduce_g(s0, tmp + 5, 'v_add_f32')
    allreduce_g(q0, tmp + 5, 'v_add_f32')
    a('v_mul_f32 v%d, %s, v%d' % (s0, f32hex(1.0 / D), s0))
    a('v_mul_f32 v%d, %s, v%d' % (q0, f32hex(1.0 / D), q0))
    a('v_fma_f32 v%d, -v%d, v%d, v%d' % (q0, s0, s0, q0))
    a('v_max_f32 v%d, 0, v%d' % (q0, q0))
    a('v_add_f32 v%d, %s, v%d' % (s1, f32hex(1e-5), q0))
    a('v_rsq_f32 v%d, v%d' % (s1, s1))
    if mode == 2:
        a('v_mul_f32 v%d, v%d, v%d' % (q1, s1, s1))
        a('v_mul_f32 v%d, v%d, v%d' % (q1, q1, q0))
        a('v_add_f32 v%d, %s, v%d' % (q1, f32hex(1e-5), q1))
        a('v_rsq_f32 v%d, v%d' % (q1, q1))
        a('v_mul_f32 v%d, v%d, v%d' % (q0, q1, s1))
    else:
        a('v_mov_b32 v%d, v%d' % (q0, s1))
    a('v_mul_f32 v%d, v%d, v%d' % (q1, s0, q0))
    a('v_sub_f32 v%d, 0, v%d' % (q1, q1))

def colsum_prepass(NT, wbase, typeB):
    RS = 128 if typeB else 32 * NT
    l = newlbl('cs')
    a('s_sub_u32 s10, s5, 1')
    a('s_cmp_ge_u32 s10, %d' % NT)
    a('s_cbranch_scc1 %s' % l)
    a('v_lshl_add_u32 v8, v3, 3, v4')
    a('v_mul_u32_u24 v8, %d, v8' % RS)
    a('v_lshl_add_u32 v8, v5, 3, v8')
    if typeB:
        a('v_lshrrev_b32 v9, 1, v4')
        a('v_and_b32 v10, 1, v3')
        a('v_lshl_or_b32 v9, v10, 1, v9')
    else:
        a('v_and_b32 v9, 1, v3')
        if NT % 2:
            a('s_cmp_eq_u32 s10, %d' % (NT - 1))
            a('s_cselect_b32 s11, 0, 1')
            a('v_and_b32 v9, s11, v9')
    a('v_xor_b32 v9, s10, v9')
    a('v_lshl_add_u32 v8, v9, 5, v8')
    a('v_add_u32 v8, %d, v8' % wbase)
    a('v_add_u32 v9, 61440, v8')
    for i in range(4): a('v_mov_b32 v%d, 0' % (12 + i))
    B0 = FRG
    for t in range(14):
        for h in range(2):
            off = (32 * t + 4 * h) * RS
            if off >= 61440: a('ds_read_b64_tr_b16 v[%d:%d], v9 offset:%d' % (B0 + 4 * t + 2 * h, B0 + 4 * t + 2 * h + 1, off - 61440))
            else: a('ds_read_b64_tr_b16 v[%d:%d], v8 offset:%d' % (B0 + 4 * t + 2 * h, B0 + 4 * t + 2 * h + 1, off))
        if t == 6 or t == 13:
            a('s_waitcnt lgkmcnt(0)')
            for tt in range(t - 6, t + 1):
                a('v_mfma_f32_16x16x32_bf16 v[12:15], %s, %s, v[12:15]' % (vr(B0 + 4 * tt), vr(ONES)))
    a('s_lshl_b32 s10, s10, 6')
    a('v_lshlrev_b32 v8, 4, v3')
    a('v_add_u32 v8, s10, v8')
    a('v_add_u32 v8, %d, v8' % CS)
    a('s_mov_b32 exec_lo, 0x00010001'); a('s_mov_b32 exec_hi, 0x00010001')
    a('ds_write_b128 v8, v[12:15]')
    a('s_mov_b64 exec, -1')
    a('s_waitcnt lgkmcnt(0)')
    a.label(l)

def cs_read(tiles, dst, tile0_sgpr=None):
    a('v_lshlrev_b32 v9, 4, v3')
    if tile0_sgpr:
        a('s_lshl_b32 s10, %s, 7' % tile0_sgpr)
        a('v_add_u32 v9, s10, v9')
    a('v_add_u32 v9, %d, v9' % CS)
    for i, T in enumerate(tiles):
        a('ds_read_b128 %s, v9 offset:%d' % (vr(dst + 4 * i), 64 * T))

def ln_apply(acc, n, cs, st):
    for i in range(n):
        a('v_mul_f32 v%d, v%d, v%d' % (acc + i, acc + i, st + 2))
        a('v_fmac_f32 v%d, v%d, v%d' % (acc + i, cs + i, st + 3))

def gemm_setup_addr(NT, ldsbase, tmp, extra_e, extra_o, K, plain=None):
    RS = 32 * NT
    a('v_lshl_add_u32 v%d, v3, 3, v4' % tmp)
    a('v_mul_u32_u24 v%d, %d, v%d' % (tmp, RS, tmp))
    a('v_lshl_add_u32 v%d, v5, 3, v%d' % (tmp, tmp))
    if ldsbase: a('v_add_u32 v%d, 0x%x, v%d' % (tmp, ldsbase, tmp))
    dp = None
    if plain is not None:
        a('v_mov_b32 v%d, v%d' % (plain[0], tmp))
        dp = DsBase(plain[0], plain[1:]); dp.prep(K * RS)
    a('v_and_b32 v%d, 1, v3' % (tmp + 1))
    a('v_lshlrev_b32 v%d, 5, v%d' % (tmp + 1, tmp + 1))
    a('v_sub_u32 v%d, v%d, v%d' % (tmp + 2, tmp, tmp + 1))
    a('v_add_u32 v%d, v%d, v%d' % (tmp, tmp, tmp + 1))
    a('v_mov_b32 v%d, v%d' % (tmp + 1, tmp + 2))
    de = DsBase(tmp, extra_e); do = DsBase(tmp + 1, extra_o)
    de.prep(K * RS); do.prep(K * RS)
    de.plain = dp
    return de, do

def gemm_reads(de, do, NT, t, fr):
    RS = 32 * NT
    for T in range(NT):
        for h in range(2):
            b = de if T % 2 == 0 else do
            if NT % 2 and T == NT - 1: b = de.plain
            r, o = b.at((32 * t + 4 * h) * RS + 32 * T)
            a('ds_read_b64_tr_b16 v[%d:%d], %s offset:%d' % (fr + 4 * T + 2 * h, fr + 4 * T + 2 * h + 1, r, o))

def gemm_loop(de, do, NT, steps, acc=ACC, frg=FRG):
    fsz = 4 * NT
    for i in range(4 * NT): a('v_mov_b32 v%d, 0' % (acc + i))
    gemm_reads(de, do, NT, 0, frg)
    for t in range(steps):
        cur = frg + fsz * (t & 1); nxt = frg + fsz * ((t + 1) & 1)
        if t + 1 < steps:
            gemm_reads(de, do, NT, t + 1, nxt)
            a('s_waitcnt lgkmcnt(%d)' % min(15, 2 * NT))
        else:
            a('s_waitcnt lgkmcnt(0)')
        for T in range(NT):
            a('v_mfma_f32_16x16x32_bf16 %s, %s, %s, %s' % (vr(acc + 4 * T), vr(cur + 4 * T), vr(ACT + 4 * t), vr(acc + 4 * T)))

def gelu(x, t):
    ca = -2 * LOG2E * 0.7978845608028654
    cb = ca * 0.044715
    a('v_mul_f32 v%d, v%d, v%d' % (t, x, x))
    a('v_mov_b32 v%d, %s' % (t + 1, f32hex(ca)))
    a('v_fmac_f32 v%d, %s, v%d' % (t + 1, f32hex(cb), t))
    a('v_mul_f32 v%d, v%d, v%d' % (t, t + 1, x))
    a('v_exp_f32 v%d, v%d' % (t, t))
    a('v_add_f32 v%d, 1.0, v%d' % (t, t))
    a('v_rcp_f32 v%d, v%d' % (t, t))
    a('v_mul_f32 v%d, v%d, v%d' % (x, x, t))

def unpack4(src, dst):
    a('v_lshlrev_b32 v%d, 16, v%d' % (dst, src))
    a('v_and_b32 v%d, 0xffff0000, v%d' % (dst + 1, src))
    a('v_lshlrev_b32 v%d, 16, v%d' % (dst + 2, src + 1))
    a('v_and_b32 v%d, 0xffff0000, v%d' % (dst + 3, src + 1))

def typeA_rows():
    a('s_lshl_b32 s8, s3, 7')
    a('s_lshl_b32 s9, s5, 4')
    a('s_add_u32 s8, s8, s9')
    a('v_add_u32 v7, s8, v2')

def A_regs_path(srdn, atr):
    a('s_mul_i32 s10, s8, 896')
    a('v_lshlrev_b32 v8, 4, v1')
    a('v_add_u32 v8, s10, v8')
    for i in range(14):
        a('s_mov_b32 s10, %d' % (i * 1024))
        a('buffer_load_dwordx4 %s, v8, s[%d:%d], s10 offen' % (vr(WST + 4 * i), srdn, srdn + 3))
    a('s_mul_i32 s11, s5, 7168')
    a('s_add_u32 s11, s11, %d' % atr)
    a('v_and_b32 v9, 8, v2')
    a('v_mul_u32_u24 v9, 896, v9')
    a('v_sub_u32 v10, v%d, v9' % FAE)
    a('v_sub_u32 v11, v%d, v9' % FAO)
    a('v_add_u32 v10, s11, v10')
    a('v_add_u32 v11, s11, v11')
    for ph in range(2):
        for i in range(7):
            if ph == 0:
                a('v_add_u32 v%d, s11, v%d' % (MISC + i, OFFS + i))
            else:
                a('v_xor_b32 v%d, 64, v%d' % (MISC + i, OFFS + i))
                a('v_add_u32 v%d, s11, v%d' % (MISC + i, MISC + i))
        for i in range(7):
            a('s_waitcnt vmcnt(%d)' % (13 - (7 * ph + i)))
            a('ds_write_b128 v%d, %s' % (MISC + i, vr(WST + 4 * (7 * ph + i))))
        a('s_waitcnt lgkmcnt(0)')
        if ph == 0:
            a('s_mov_b32 exec_lo, 0x00ff00ff'); a('s_mov_b32 exec_hi, 0x00ff00ff')
        else:
            a('s_mov_b32 exec_lo, 0xff00ff00'); a('s_mov_b32 exec_hi, 0xff00ff00')
        for t in range(14):
            a('ds_read_b128 %s, v%d offset:%d' % (vr(ACT + 4 * t), 10 + (t & 1), (t >> 1) * 128))
        a('s_waitcnt lgkmcnt(0)')
        a('s_mov_b64 exec, -1')

def typeB_rows():
    a('s_lshl_b32 s8, s6, 6')
    a('s_lshr_b32 s9, s5, 1')
    a('s_lshl_b32 s9, s9, 4')
    a('s_add_u32 s8, s8, s9')
    a('v_add_u32 v7, s8, v2')
    a('s_and_b32 s13, s5, 1')

def A_dma_addr(shifted=False):
    a('s_lshl_b32 s10, s6, 6')
    a('s_lshl_b32 s11, s5, 3')
    a('s_add_u32 s10, s10, s11')
    a('s_mul_i32 s10, s10, 896')
    a('s_and_b32 s11, s5, 1')
    a('s_lshl_b32 s11, s11, 6')
    for i in range(7):
        r = MISC + i
        a('v_xor_b32 v%d, s11, v%d' % (r, OFFS + i))
        if shifted:
            m56_, sh56_ = magic_div(56, 448)
            m14_, sh14_ = magic_div(14, 64)
            a('v_lshrrev_b32 v%d, 4, v%d' % (MISC + 11, r))
            a('v_mul_u32_u24 v%d, %d, v%d' % (MISC + 8, m56_, MISC + 11))
            a('v_lshrrev_b32 v%d, %d, v%d' % (MISC + 8, sh56_, MISC + 8))
            a('v_mul_u32_u24 v%d, 56, v%d' % (MISC + 8, MISC + 8))
            a('v_sub_u32 v%d, v%d, v%d' % (MISC + 8, MISC + 11, MISC + 8))
            a('v_mul_u32_u24 v%d, %d, v%d' % (MISC + 8, m14_, MISC + 8))
            a('v_lshrrev_b32 v%d, %d, v%d' % (MISC + 8, sh14_, MISC + 8))
            a('v_lshrrev_b32 v%d, 1, v%d' % (MISC + 9, MISC + 8))
            a('v_add_u32 v%d, 1, v%d' % (MISC + 9, MISC + 9))
            a('v_mul_u32_u24 v%d, 896, v%d' % (MISC + 9, MISC + 9))
            a('v_and_b32 v%d, 1, v%d' % (MISC + 8, MISC + 8))
            a('v_cmp_eq_u32 vcc, 1, v%d' % (MISC + 8))
            a('v_sub_u32 v%d, 0, v%d' % (MISC + 10, MISC + 9))
            a('v_cndmask_b32 v%d, v%d, v%d, vcc' % (MISC + 9, MISC + 10, MISC + 9))
            a('v_add_u32 v%d, v%d, v%d' % (r, r, MISC + 9))
        a('v_add_u32 v%d, s10, v%d' % (r, r))

def A_dma_issue(srdn, areg):
    a('s_mul_i32 s12, s5, 7168')
    a('s_add_u32 s12, s12, %d' % areg)
    for i in range(7):
        a('s_add_u32 m0, s12, %d' % (i * 1024))
        a('buffer_load_dwordx4 v%d, s[%d:%d], 0 offen lds' % (MISC + i, srdn, srdn + 3))

def A_frag_read(areg):
    a('s_lshr_b32 s10, s5, 1')
    a('s_mul_i32 s10, s10, 14336')
    a('s_add_u32 s10, s10, %d' % areg)
    a('v_add_u32 v10, s10, v%d' % FAE)
    a('v_add_u32 v11, s10, v%d' % FAO)
    for t in range(14):
        a('ds_read_b128 %s, v%d offset:%d' % (vr(ACT + 4 * t), 10 + (t & 1), (t >> 1) * 128))

def W_dma64(srdn, wreg, K, krow0=0, wstride=896):
    a('v_lshrrev_b32 v8, 3, v1')
    a('s_lshl_b32 s10, s5, 3')
    a('v_add_u32 v8, s10, v8')
    a('s_mov_b32 s10, %d' % wstride)
    a('v_mul_lo_u32 v8, v8, s10')
    a('v_bfe_u32 v9, v1, 4, 1')
    a('s_and_b32 s10, s5, 1')
    a('s_lshl_b32 s10, s10, 1')
    a('v_or_b32 v9, s10, v9')
    a('v_bfe_u32 v10, v1, 1, 2')
    a('v_xor_b32 v9, v9, v10')
    a('v_lshlrev_b32 v9, 5, v9')
    a('v_and_b32 v10, 1, v1')
    a('v_lshlrev_b32 v10, 4, v10')
    a('v_add3_u32 v8, v8, v9, v10')
    a('s_lshl_b32 s10, s7, 7')
    a('s_add_u32 s10, s10, %d' % (krow0 * wstride))
    a('v_add_u32 v8, s10, v8')
    a('s_lshl_b32 s12, s5, 10')
    a('s_add_u32 s12, s12, %d' % wreg)
    for i in range(K // 64):
        a('s_add_u32 m0, s12, %d' % (i * 8192))
        a('s_mov_b32 s10, %d' % (i * 64 * wstride))
        a('buffer_load_dwordx4 v8, s[%d:%d], s10 offen lds' % (srdn, srdn + 3))

def tr_bases64(wreg, r0):
    a('v_lshl_add_u32 v%d, v3, 3, v4' % r0)
    a('v_lshlrev_b32 v%d, 7, v%d' % (r0, r0))
    a('v_lshl_add_u32 v%d, v5, 3, v%d' % (r0, r0))
    a('v_add_u32 v%d, %d, v%d' % (r0, wreg, r0))
    a('v_lshrrev_b32 v%d, 1, v4' % (r0 + 2))
    a('v_and_b32 v%d, 1, v3' % (r0 + 3))
    a('v_lshl_or_b32 v%d, v%d, 1, v%d' % (r0 + 2, r0 + 3, r0 + 2))
    a('s_lshl_b32 s10, s13, 1')
    a('v_xor_b32 v%d, s10, v%d' % (r0 + 3, r0 + 2))
    a('v_lshl_add_u32 v%d, v%d, 5, v%d' % (r0 + 1, r0 + 3, r0))
    a('v_xor_b32 v%d, 1, v%d' % (r0 + 3, r0 + 3))
    a('v_lshl_add_u32 v%d, v%d, 5, v%d' % (r0 + 3, r0 + 3, r0))
    a('v_mov_b32 v%d, v%d' % (r0, r0 + 1))
    a('v_mov_b32 v%d, v%d' % (r0 + 1, r0 + 3))

def gemm64(rb, steps=14):
    def reads(t, fr):
        for T in range(2):
            for h in range(2):
                a('ds_read_b64_tr_b16 v[%d:%d], v%d offset:%d' % (fr + 4 * T + 2 * h, fr + 4 * T + 2 * h + 1, rb + T, (32 * t + 4 * h) * 128))
    for i in range(8): a('v_mov_b32 v%d, 0' % (ACC + i))
    reads(0, FRG); reads(1, FRG + 8)
    for t in range(steps):
        cur = FRG + 8 * (t % 3)
        if t + 2 < steps:
            reads(t + 2, FRG + 8 * ((t + 2) % 3))
            a('s_waitcnt lgkmcnt(8)')
        elif t + 1 < steps:
            a('s_waitcnt lgkmcnt(4)')
        else:
            a('s_waitcnt lgkmcnt(0)')
        for T in range(2):
            a('v_mfma_f32_16x16x32_bf16 %s, %s, %s, %s' % (vr(ACC + 4 * T), vr(cur + 4 * T), vr(ACT + 4 * t), vr(ACC + 4 * T)))

def swap16(pk):
    a('v_permlane16_swap_b32 v%d, v%d' % (pk, pk + 2))
    a('v_permlane16_swap_b32 v%d, v%d' % (pk + 1, pk + 3))

def st16_addr(dst, src):
    a('v_lshlrev_b32 v%d, 3, v3' % dst)
    a('v_sub_u32 v%d, v%d, v%d' % (dst, src, dst))
    a('v_and_b32 v%d, 1, v3' % (TMPA))
    a('v_lshl_add_u32 v%d, v%d, 5, v%d' % (dst, TMPA, dst))
    a('v_lshrrev_b32 v%d, 1, v3' % (TMPA))
    a('v_lshl_add_u32 v%d, v%d, 4, v%d' % (dst, TMPA, dst))

def out_addrB(reg):
    a('s_mov_b32 s10, 896')
    a('v_mul_lo_u32 v%d, v7, s10' % reg)
    a('s_lshl_b32 s10, s7, 7')
    a('s_lshl_b32 s11, s13, 6')
    a('s_add_u32 s10, s10, s11')
    a('v_lshlrev_b32 v%d, 3, v3' % (reg + 1))
    a('v_add3_u32 v%d, v%d, v%d, s10' % (reg, reg, reg + 1))

def softmax_pair(p, outp, tmp):
    mx, mn, t, sp, sm = tmp, tmp + 1, tmp + 2, tmp + 3, tmp + 4
    em = tmp + 6
    for i in range(4):
        a('v_cndmask_b32 v%d, v%d, v%d, s[60:61]' % (p + 4 + i, p + 4 + i, p))
    a('v_max3_f32 v%d, v%d, v%d, v%d' % (mx, p, p + 1, p + 2))
    a('v_max3_f32 v%d, v%d, v%d, v%d' % (mx, mx, p + 3, p + 4))
    a('v_max3_f32 v%d, v%d, v%d, v%d' % (mx, mx, p + 5, p + 6))
    a('v_max_f32 v%d, v%d, v%d' % (mx, mx, p + 7))
    a('v_min3_f32 v%d, v%d, v%d, v%d' % (mn, p, p + 1, p + 2))
    a('v_min3_f32 v%d, v%d, v%d, v%d' % (mn, mn, p + 3, p + 4))
    a('v_min3_f32 v%d, v%d, v%d, v%d' % (mn, mn, p + 5, p + 6))
    a('v_min_f32 v%d, v%d, v%d' % (mn, mn, p + 7))
    allreduce_g(mx, t, 'v_max_f32')
    allreduce_g(mn, t, 'v_min_f32')
    a('v_mov_b32 v%d, %s' % (t, f32hex(LOG2E)))
    for i in range(8):
        a('v_sub_f32 v%d, v%d, v%d' % (em + i, mn, p + i))
        a('v_sub_f32 v%d, v%d, v%d' % (p + i, p + i, mx))
        a('v_mul_f32 v%d, v%d, v%d' % (em + i, em + i, t))
        a('v_mul_f32 v%d, v%d, v%d' % (p + i, p + i, t))
        a('v_exp_f32 v%d, v%d' % (em + i, em + i))
        a('v_exp_f32 v%d, v%d' % (p + i, p + i))
    for i in range(4, 8):
        a('v_cndmask_b32 v%d, v%d, 0, s[60:61]' % (p + i, p + i))
        a('v_cndmask_b32 v%d, v%d, 0, s[60:61]' % (em + i, em + i))
    a('v_add_f32 v%d, v%d, v%d' % (sp, p, p + 1)); a('v_add_f32 v%d, v%d, v%d' % (sm, em, em + 1))
    for i in range(2, 8):
        a('v_add_f32 v%d, v%d, v%d' % (sp, sp, p + i)); a('v_add_f32 v%d, v%d, v%d' % (sm, sm, em + i))
    allreduce_g(sp, t, 'v_add_f32')
    allreduce_g(sm, t, 'v_add_f32')
    a('v_rcp_f32 v%d, v%d' % (sp, sp)); a('v_rcp_f32 v%d, v%d' % (sm, sm))
    for i in range(8):
        a('v_mul_f32 v%d, v%d, v%d' % (p + i, p + i, sp))
        a('v_mul_f32 v%d, v%d, v%d' % (em + i, em + i, sm))
    for i in range(4):
        a('v_cvt_pk_bf16_f32 v%d, v%d, v%d' % (outp + i, p + 2 * i, p + 2 * i + 1))
        a('v_cvt_pk_bf16_f32 v%d, v%d, v%d' % (outp + 4 + i, em + 2 * i, em + 2 * i + 1))

def set_target(n):
    a('s_add_u32 s14, s72, %d' % n)

def stage_S1():
    NT = 6
    typeA_rows()
    srd(40, 'wqkv', 0, D * 3 * D * 2)
    srd(44, 'xsrc', 0, SZ_X)
    srd(48, 'wphi', 0, H * DH * DH * 2)
    lsrd(52, 'KVP', SZ_KVP)
    a('v_and_b32 v8, 255, v0')
    a('v_lshrrev_b32 v9, 3, v8')
    a('v_and_b32 v10, 7, v8')
    a('v_mul_u32_u24 v11, 56, v9')
    a('v_lshl_add_u32 v11, v10, 3, v11')
    a('s_mul_i32 s10, s4, 1568')
    a('v_add_u32 v11, s10, v11')
    a('v_cmp_gt_u32 vcc, 28, v9')
    a('v_cmp_gt_u32 s[62:63], 7, v10')
    a('s_and_b64 vcc, vcc, s[62:63]')
    a('v_mov_b32 v12, 0x7fffffff')
    a('v_cndmask_b32 v11, v12, v11, vcc')
    a('buffer_load_dwordx2 v[%d:%d], v11, s[48:51], 0 offen' % (MISC + 4, MISC + 5))
    a('v_lshlrev_b32 v%d, 3, v8' % (MISC + 6))
    rounds = w_stage_issue(40, 3 * D * 2, D, NT, 32, [(0, 56, 4), (896, 56, 4), (1792, 56, 4)], 8)
    a('s_waitcnt vmcnt(%d)' % rounds)
    a('v_add_u32 v%d, 0x%x, v%d' % (MISC + 6, S1_WPHI, MISC + 6))
    a('ds_write_b64 v%d, v[%d:%d]' % (MISC + 6, MISC + 4, MISC + 5))
    w_stage_write(rounds, NT, 32, S1_W, 9, [MISC], 0)
    a('s_waitcnt lgkmcnt(0)')
    a('s_barrier')
    stamp()
    colsum_prepass(NT, S1_W, False)
    lskip = newlbl('s1nodep'); lj = newlbl('s1j')
    a('s_cmp_eq_u32 s64, 0')
    a('s_cbranch_scc1 %s' % lskip)
    a('s_lshl_b32 s62, s3, 1'); a('s_add_u32 s63, s62, 1')
    wait_dep(6, ['s62', 's63'], 7, prev_layer=True)
    a('s_branch %s' % lj)
    a.label(lskip)
    a('s_barrier')
    a.label(lj)
    stamp()
    A_regs_path(44, S1_ATR)
    stamp()
    de, do = gemm_setup_addr(NT, S1_W, 10, [MISC], [MISC + 1], D)
    ST = MISC + 4
    ln_stats(1, ST)
    stamp()
    gemm_loop(de, do, NT, 14)
    cs_read(range(6), WST)
    a('s_waitcnt lgkmcnt(0)')
    ln_apply(ACC, 24, WST, ST)
    stamp()
    WA = 16; QB = 24; KB = 28; PQ = 32; PK = 40; PHK = 56; VP = 64; TMP = 72
    a('v_lshl_add_u32 v8, v3, 2, v4')
    a('v_lshlrev_b32 v8, 6, v8')
    a('v_lshl_add_u32 v8, v5, 3, v8')
    a('v_add_u32 v8, 0x%x, v8' % S1_WPHI)
    for Fi in range(2):
        for h in range(2):
            a('ds_read_b64_tr_b16 v[%d:%d], v8 offset:%d' % (WA + 4 * Fi + 2 * h, WA + 4 * Fi + 2 * h + 1, h * 1024 + Fi * 32))
    for i in range(4):
        a('v_cvt_pk_bf16_f32 v%d, v%d, v%d' % (QB + i, ACC + 2 * i, ACC + 2 * i + 1))
        a('v_cvt_pk_bf16_f32 v%d, v%d, v%d' % (KB + i, ACC + 8 + 2 * i, ACC + 8 + 2 * i + 1))
    a('v_cndmask_b32 v%d, v%d, 1.0, s[60:61]' % (ACC + 20, ACC + 20))
    for i in range(1, 4):
        a('v_cndmask_b32 v%d, v%d, 0, s[60:61]' % (ACC + 20 + i, ACC + 20 + i))
    for i in range(4):
        a('v_cvt_pk_bf16_f32 v%d, v%d, v%d' % (VP + i, ACC + 16 + 2 * i, ACC + 16 + 2 * i + 1))
    for i in range(16): a('v_mov_b32 v%d, 0' % (PQ + i))
    a('s_waitcnt lgkmcnt(0)')
    for Fi in range(2):
        a('v_mfma_f32_16x16x32_bf16 %s, %s, %s, %s' % (vr(PK + 4 * Fi), vr(WA + 4 * Fi), vr(KB), vr(PK + 4 * Fi)))
        a('v_mfma_f32_16x16x32_bf16 %s, %s, %s, %s' % (vr(PQ + 4 * Fi), vr(WA + 4 * Fi), vr(QB), vr(PQ + 4 * Fi)))
    softmax_pair(PK, PHK, TMP)
    a('s_barrier')
    a('s_lshl_b32 s10, s5, 4')
    a('v_add_u32 v9, s10, v2')
    a('v_lshlrev_b32 v10, 7, v9')
    a('v_lshl_add_u32 v10, v3, 4, v10')
    a('v_add_u32 v10, 0x%x, v10' % S1_PHIK)
    a('ds_write_b128 v10, %s' % vr(PHK))
    a('ds_write_b128 v10, %s offset:64' % vr(PHK + 4))
    a('v_lshlrev_b32 v10, 6, v9')
    a('v_lshl_add_u32 v10, v3, 4, v10')
    a('v_add_u32 v10, 0x%x, v10' % S1_VV)
    a('ds_write_b128 v10, %s' % vr(VP))
    a('s_waitcnt lgkmcnt(0)')
    a('s_barrier')
    a('v_lshl_add_u32 v8, v3, 3, v4')
    a('s_and_b32 s10, s5, 1')
    a('s_lshl_b32 s10, s10, 5')
    a('s_add_u32 s10, s10, 0x%x' % S1_VV)
    a('v_lshlrev_b32 v9, 6, v8')
    a('v_lshl_add_u32 v9, v5, 3, v9')
    a('v_add_u32 v9, s10, v9')
    a('s_lshr_b32 s10, s5, 1')
    a('s_lshl_b32 s10, s10, 5')
    a('s_add_u32 s10, s10, 0x%x' % S1_PHIK)
    a('v_lshlrev_b32 v10, 7, v8')
    a('v_lshl_add_u32 v10, v5, 3, v10')
    a('v_add_u32 v10, s10, v10')
    KA = 96; KBf = 112; KD = 128
    for t in range(4):
        for h in range(2):
            a('ds_read_b64_tr_b16 v[%d:%d], v9 offset:%d' % (KA + 4 * t + 2 * h, KA + 4 * t + 2 * h + 1, (32 * t + 4 * h) * 64))
            a('ds_read_b64_tr_b16 v[%d:%d], v10 offset:%d' % (KBf + 4 * t + 2 * h, KBf + 4 * t + 2 * h + 1, (32 * t + 4 * h) * 128))
    for i in range(4): a('v_mov_b32 v%d, 0' % (KD + i))
    a('s_waitcnt lgkmcnt(0)')
    for t in range(4):
        a('v_mfma_f32_16x16x32_bf16 %s, %s, %s, %s' % (vr(KD), vr(KA + 4 * t), vr(KBf + 4 * t), vr(KD)))
    a('s_lshl_b32 s10, s3, 4'); a('s_add_u32 s10, s10, s4'); a('s_lshl_b32 s10, s10, 13')
    a('s_and_b32 s11, s5, 1'); a('s_lshl_b32 s11, s11, 6'); a('s_add_u32 s10, s10, s11')
    a('s_lshr_b32 s11, s5, 1'); a('s_lshl_b32 s11, s11, 11'); a('s_add_u32 s10, s10, s11')
    a('v_lshlrev_b32 v8, 7, v2')
    a('v_lshl_add_u32 v8, v3, 4, v8')
    a('v_add_u32 v8, s10, v8')
    a('buffer_store_dwordx4 %s, v8, s[52:55], 0 offen sc1' % vr(KD))
    softmax_pair(PQ, PHQ, TMP)
    get_tag()
    signal(0, ['s4'], 's3')
    stamp()

def stage_S2a():
    lsrd(40, 'KVP', SZ_KVP)
    lsrd(52, 'O', SZ_X)
    lsk = newlbl('nopf')
    a('s_cmp_eq_u32 s74, 0')
    a('s_cbranch_scc1 %s' % lsk)
    srd(44, 'wo', 0, D * D * 2)
    W_dma64(44, R0, D)
    a.label(lsk)
    wait_dep(0, ['s4'], 16)
    stamp()
    a('s_lshl_b32 s10, s4, 13')
    a('v_lshlrev_b32 v8, 4, v0')
    a('v_add_u32 v8, s10, v8')
    PT = 72
    for cc in range(16):
        a('s_mov_b32 s10, 0x%x' % (cc * 16 * 8192))
        a('buffer_load_dwordx4 %s, v8, s[40:43], s10 offen' % vr(PT + 4 * cc))
    for cc in range(1, 16):
        a('s_waitcnt vmcnt(%d)' % (15 - cc))
        for i in range(4):
            a('v_add_f32 v%d, v%d, v%d' % (PT + i, PT + i, PT + 4 * cc + i))
    a('v_cvt_pk_bf16_f32 v%d, v%d, v%d' % (PT + 4, PT, PT + 1))
    a('v_cvt_pk_bf16_f32 v%d, v%d, v%d' % (PT + 5, PT + 2, PT + 3))
    a('v_lshlrev_b32 v9, 3, v0')
    a('ds_write_b64 v9, v[%d:%d] offset:%d' % (PT + 4, PT + 5, 0)) if False else None
    a('v_add_u32 v9, %d, v9' % S2A_KV)
    a('ds_write_b64 v9, v[%d:%d]' % (PT + 4, PT + 5))
    a('s_waitcnt lgkmcnt(0)')
    a('s_barrier')
    a('v_lshl_add_u32 v9, v3, 3, v4')
    a('v_lshlrev_b32 v9, 6, v9')
    a('v_lshl_add_u32 v9, v5, 3, v9')
    a('v_add_u32 v9, %d, v9' % S2A_KV)
    AF = 24; OD = 40
    for Tm in range(2):
        for u in range(2):
            for h in range(2):
                a('ds_read_b64_tr_b16 v[%d:%d], v9 offset:%d' % (AF + 8 * Tm + 4 * u + 2 * h, AF + 8 * Tm + 4 * u + 2 * h + 1, (32 * u + 4 * h) * 64 + Tm * 32))
    for i in range(8): a('v_mov_b32 v%d, 0' % (OD + i))
    a('s_waitcnt lgkmcnt(0)')
    for u in range(2):
        for Tm in range(2):
            a('v_mfma_f32_16x16x32_bf16 %s, %s, %s, %s' % (vr(OD + 4 * Tm), vr(AF + 8 * Tm + 4 * u), vr(PHQ + 4 * u), vr(OD + 4 * Tm)))
    a('v_cndmask_b32 v48, 0, v%d, s[60:61]' % (OD + 4))
    allreduce_g(48, 49, 'v_add_f32')
    a('v_add_f32 v48, %s, v48' % f32hex(1e-6))
    a('v_rcp_f32 v48, v48')
    for i in range(8): a('v_mul_f32 v%d, v%d, v48' % (OD + i, OD + i))
    for i in range(4): a('v_cvt_pk_bf16_f32 v%d, v%d, v%d' % (50 + i, OD + 2 * i, OD + 2 * i + 1))
    a('s_mov_b32 s10, 896')
    a('v_mul_lo_u32 v12, v7, s10')
    a('s_mul_i32 s10, s4, 56')
    a('v_and_b32 v13, 1, v3'); a('v_lshlrev_b32 v13, 5, v13')
    a('v_lshrrev_b32 v14, 1, v3'); a('v_lshlrev_b32 v14, 3, v14')
    a('v_add3_u32 v12, v12, v13, v14')
    a('v_add_u32 v12, s10, v12')
    a('buffer_store_dwordx2 v[50:51], v12, s[52:55], 0 offen sc1')
    a('s_mov_b32 exec_hi, 0x0000ffff')
    a('buffer_store_dwordx2 v[52:53], v12, s[52:55], 0 offen offset:16 sc1')
    a('s_mov_b32 exec_hi, -1')
    a('s_lshl_b32 s62, s3, 1'); a('s_add_u32 s63, s62, 1')
    signal(1, ['s62', 's63'], 's4')
    stamp()

def stage_small(kind, wreg, areg, target, prefetch):
    typeB_rows()
    if kind == 'wo':
        lsrd(44, 'O', SZ_X); srd(48, 'xsrc', 0, SZ_X); lsrd(52, 'XP', SZ_X)
    elif kind == 'w1':
        lsrd(44, 'XP', SZ_X); lsrd(52, 'HH', SZ_X); lsrd(56, 'STATS', SZ_STATS)
    else:
        lsrd(44, 'HH', SZ_X); lsrd(48, 'XP', SZ_X); lsrd(52, 'X1', SZ_X); lsrd(56, 'STATS', SZ_STATS)
    st = {'wo': 1, 'w1': 2, 'w2': 3}[kind]
    A_dma_addr(shifted=(kind == 'w2'))
    if kind == 'w1':
        a('s_waitcnt vmcnt(0)')
        a('s_barrier')
        colsum_prepass(4, wreg, True)
    if kind == 'w2':
        a('s_sub_u32 s62, s6, 1'); a('s_max_i32 s62, s62, 0')
        a('s_add_u32 s63, s6, 1'); a('s_min_u32 s63, s63, 31')
        wait_dep(st, ['s6', 's62', 's63'], 7)
    else:
        wait_dep(st, ['s6'], 16 if kind == 'wo' else 7)
    stamp()
    A_dma_issue(44, areg)
    out_addrB(13)
    RES = 112
    if kind in ('wo', 'w2'):
        a('buffer_load_dwordx2 v[%d:%d], v13, s[48:51], 0 offen' % (RES, RES + 1))
        a('buffer_load_dwordx2 v[%d:%d], v13, s[48:51], 0 offen offset:32' % (RES + 2, RES + 3))
    if kind == 'w2':
        a('v_lshlrev_b32 v14, 3, v7')
        a('buffer_load_dwordx2 v[%d:%d], v14, s[56:59], 0 offen' % (RES + 4, RES + 5))
    tr_bases64(wreg, 120)
    a('s_waitcnt vmcnt(0)')
    a('s_barrier')
    stamp()
    A_frag_read(areg)
    a('s_waitcnt lgkmcnt(0)')
    a('s_barrier')
    prefetch()
    if kind == 'w1':
        ln_stats(2, MISC + 12)
        l = newlbl('nostat')
        a('s_or_b32 s10, s7, s13')
        a('s_cmp_lg_u32 s10, 0')
        a('s_cbranch_scc1 %s' % l)
        a('v_lshlrev_b32 v14, 3, v7')
        a('s_mov_b64 exec, 0xffff')
        a('buffer_store_dwordx2 v[%d:%d], v14, s[56:59], 0 offen sc1' % (MISC + 12, MISC + 13))
        a('s_mov_b64 exec, -1')
        a.label(l)
    stamp()
    gemm64(120)
    if kind == 'w1':
        cs_read([0, 1], 100, 's13')
        a('s_waitcnt lgkmcnt(0)')
        ln_apply(ACC, 8, 100, MISC + 12)
    stamp()
    T0 = MISC
    if kind == 'wo':
        unpack4(RES, T0); unpack4(RES + 2, T0 + 4)
        for i in range(8): a('v_add_f32 v%d, v%d, v%d' % (ACC + i, ACC + i, T0 + i))
    elif kind == 'w1':
        for i in range(8): gelu(ACC + i, T0 + 2 * (i & 3))
    else:
        unpack4(RES, T0); unpack4(RES + 2, T0 + 4)
        for i in range(8):
            a('v_sub_f32 v%d, v%d, v%d' % (T0 + i, T0 + i, RES + 4))
            a('v_fmac_f32 v%d, v%d, v%d' % (ACC + i, T0 + i, RES + 5))
    for i in range(4):
        a('v_cvt_pk_bf16_f32 v%d, v%d, v%d' % (T0 + 8 + i, ACC + 2 * i, ACC + 2 * i + 1))
    st16_addr(14, 13)
    swap16(T0 + 8)
    a('buffer_store_dwordx4 %s, v14, s[52:55], 0 offen sc1' % vr(T0 + 8))
    signal(st + 1, ['s6'], 's7')
    stamp()

S5_W = R1
def stage_S5():
    NT = 7
    typeA_rows()
    srd(40, 'w3', 0, D * F * 2)
    lsrd(44, 'X1', SZ_X)
    lsrd(52, 'G', SZ_G)
    lpf = newlbl('s5pf')
    a('s_cmp_lg_u32 s74, 0')
    a('s_cbranch_scc1 %s' % lpf)
    W_dma_generic(40, F * 2, D, NT, [(0, 224, 14)], S5_W)
    a.label(lpf)
    a('s_waitcnt vmcnt(0)')
    a('s_barrier')
    stamp()
    colsum_prepass(NT, S5_W, False)
    a('s_lshl_b32 s62, s3, 1'); a('s_add_u32 s63, s62, 1')
    wait_dep(4, ['s62', 's63'], 7)
    stamp()
    A_regs_path(44, R0)
    stamp()
    ST = MISC + 12
    ln_stats(1, ST)
    de, do = gemm_setup_addr(NT, S5_W, 10, [MISC], [MISC + 1], D, plain=[MISC + 2, MISC + 3])
    a('s_mov_b32 s10, %d' % (F * 2))
    a('v_mul_lo_u32 v13, v7, s10')
    a('s_mul_i32 s10, s4, 224')
    a('v_lshlrev_b32 v14, 3, v3')
    a('v_add3_u32 v13, v13, v14, s10')
    stamp()
    gemm_loop(de, do, NT, 14)
    cs_read(range(7), WST)
    a('s_waitcnt lgkmcnt(0)')
    ln_apply(ACC, 28, WST, ST)
    stamp()
    T0 = MISC
    st16_addr(14, 13)
    PK = 16
    for T in range(NT):
        for i in range(4): gelu(ACC + 4 * T + i, T0 + 2 * i)
        a('v_cvt_pk_bf16_f32 v%d, v%d, v%d' % (PK + 2 * T, ACC + 4 * T, ACC + 4 * T + 1))
        a('v_cvt_pk_bf16_f32 v%d, v%d, v%d' % (PK + 2 * T + 1, ACC + 4 * T + 2, ACC + 4 * T + 3))
        if T & 1:
            swap16(PK + 2 * T - 2)
            a('buffer_store_dwordx4 %s, v14, s[52:55], 0 offen offset:%d sc1' % (vr(PK + 2 * T - 2), 32 * (T - 1)))
    a('buffer_store_dwordx2 v[%d:%d], v13, s[52:55], 0 offen offset:%d sc1' % (PK + 12, PK + 13, 32 * 6))
    a('s_lshl_b32 s62, s3, 1'); a('s_add_u32 s63, s62, 1')
    signal(5, ['s62', 's63'], 's4')
    stamp()

def stage_S6():
    typeB_rows()
    srd(40, 'w4', 0, D * F * 2)
    lsrd(44, 'G', SZ_G)
    lsrd(48, 'XP', SZ_X)
    lsrd(56, 'X1', SZ_X)
    srd(52, 'xdst', 0, SZ_X)
    a('v_lshrrev_b32 v16, 3, v1')
    a('s_lshl_b32 s10, s5, 3')
    a('v_add_u32 v16, s10, v16')
    a('v_mul_u32_u24 v16, 896, v16')
    a('v_bfe_u32 v9, v1, 4, 1')
    a('s_and_b32 s10, s5, 1')
    a('s_lshl_b32 s10, s10, 1')
    a('v_or_b32 v9, s10, v9')
    a('v_bfe_u32 v10, v1, 1, 2')
    a('v_xor_b32 v9, v9, v10')
    a('v_lshlrev_b32 v9, 5, v9')
    a('v_and_b32 v10, 1, v1')
    a('v_lshlrev_b32 v10, 4, v10')
    a('v_add3_u32 v16, v16, v9, v10')
    a('s_lshl_b32 s10, s7, 7')
    a('v_add_u32 v16, s10, v16')
    a('v_lshrrev_b32 v17, 5, v1')
    a('s_lshl_b32 s10, s5, 1')
    a('v_add_u32 v17, s10, v17')
    a('v_and_b32 v9, 31, v1')
    a('v_and_b32 v10, 15, v17')
    a('v_xor_b32 v9, v9, v10')
    a('v_lshlrev_b32 v9, 4, v9')
    a('s_lshl_b32 s10, s6, 6')
    a('v_add_u32 v17, s10, v17')
    a('s_mov_b32 s10, %d' % (F * 2))
    a('v_mul_lo_u32 v17, v17, s10')
    a('v_add_u32 v17, v17, v9')
    a('s_lshl_b32 s12, s5, 10')
    def dmaW(kc):
        b = (kc & 1) * 32768 + 65536
        for i in range(4):
            a('s_add_u32 m0, s12, %d' % (b + i * 8192))
            a('s_mov_b32 s10, %d' % ((kc * 256 + i * 64) * 896))
            a('buffer_load_dwordx4 v16, s[40:43], s10 offen lds')
    def dmaA(kc):
        b = (kc & 1) * 32768
        for i in range(4):
            a('s_add_u32 m0, s12, %d' % (b + i * 8192))
            a('s_mov_b32 s10, %d' % (kc * 512 + i * 16 * F * 2))
            a('buffer_load_dwordx4 v17, s[44:47], s10 offen lds')
    dmaW(0); dmaW(1)
    wait_dep(5, ['s6'], 16)
    stamp()
    dmaA(0); dmaA(1)
    out_addrB(13)
    tr_bases64(65536, 18)
    a('s_lshr_b32 s10, s5, 1')
    a('s_lshl_b32 s10, s10, 13')
    a('v_lshlrev_b32 v24, 9, v2')
    a('v_add_u32 v24, s10, v24')
    a('v_xor_b32 v25, v3, v2')
    for t in range(4):
        a('v_xor_b32 v%d, %d, v25' % (26 + t, 4 * t))
        a('v_lshl_add_u32 v%d, v%d, 4, v24' % (26 + t, 26 + t))
    RES = 40
    for i in range(8): a('v_mov_b32 v%d, 0' % (ACC + i))
    BF = 64
    for kc in range(7):
        bo = (kc & 1) * 32768
        if kc == 0: a('s_waitcnt vmcnt(4)')
        elif kc < 6: a('s_waitcnt vmcnt(8)')
        else: a('s_waitcnt vmcnt(4)')
        a('s_barrier')
        wb = 18
        def reads(t, slot):
            a('ds_read_b128 %s, v%d offset:%d' % (vr(BF + 4 * slot), 26 + (t & 3), bo + (t >> 2) * 256))
            for T in range(2):
                for h in range(2):
                    a('ds_read_b64_tr_b16 v[%d:%d], v%d offset:%d' % (FRG + 8 * slot + 4 * T + 2 * h, FRG + 8 * slot + 4 * T + 2 * h + 1, wb + T, bo + (32 * t + 4 * h) * 128))
        reads(0, 0); reads(1, 1)
        for t in range(8):
            if t + 2 < 8:
                reads(t + 2, (t + 2) % 3); a('s_waitcnt lgkmcnt(10)')
            elif t + 1 < 8: a('s_waitcnt lgkmcnt(5)')
            else: a('s_waitcnt lgkmcnt(0)')
            sl = t % 3
            for T in range(2):
                a('v_mfma_f32_16x16x32_bf16 %s, %s, %s, %s' % (vr(ACC + 4 * T), vr(FRG + 8 * sl + 4 * T), vr(BF + 4 * sl), vr(ACC + 4 * T)))
        if kc + 2 < 7:
            a('s_barrier')
            dmaW(kc + 2); dmaA(kc + 2)
        if kc == 5:
            a('buffer_load_dwordx2 v[%d:%d], v13, s[48:51], 0 offen' % (RES, RES + 1))
            a('buffer_load_dwordx2 v[%d:%d], v13, s[48:51], 0 offen offset:32' % (RES + 2, RES + 3))
            a('buffer_load_dwordx2 v[%d:%d], v13, s[56:59], 0 offen' % (RES + 4, RES + 5))
            a('buffer_load_dwordx2 v[%d:%d], v13, s[56:59], 0 offen offset:32' % (RES + 6, RES + 7))
    stamp()
    T0 = MISC
    a('s_waitcnt vmcnt(0)')
    unpack4(RES, T0); unpack4(RES + 2, T0 + 4)
    for i in range(8): a('v_add_f32 v%d, v%d, v%d' % (ACC + i, ACC + i, T0 + i))
    unpack4(RES + 4, T0); unpack4(RES + 6, T0 + 4)
    for i in range(8): a('v_add_f32 v%d, v%d, v%d' % (ACC + i, ACC + i, T0 + i))
    for i in range(4):
        a('v_cvt_pk_bf16_f32 v%d, v%d, v%d' % (T0 + 8 + i, ACC + 2 * i, ACC + 2 * i + 1))
    st16_addr(14, 13)
    swap16(T0 + 8)
    a('buffer_store_dwordx4 %s, v14, s[52:55], 0 offen sc1' % vr(T0 + 8))
    signal(6, ['s6'], 's7')
    stamp()

def build():
    a.raw('.p2align 8')
    a.raw('.globl %s' % KNAME)
    a.raw('.type %s,@function' % KNAME)
    a.raw('%s:' % KNAME)
    a('s_cmp_ge_u32 s2, 256')
    a('s_cbranch_scc1 L_end')
    a('s_load_dwordx16 s[16:31], s[0:1], 0x0')
    a('s_load_dwordx8 s[32:39], s[0:1], 0x40')
    a('''s_and_b32 s10, s2, 7
         s_lshr_b32 s11, s2, 3
         s_and_b32 s12, s11, 1
         s_lshl_b32 s12, s12, 3
         s_add_u32 s3, s10, s12
         s_lshr_b32 s4, s11, 1
         s_mul_i32 s12, s11, 37
         s_lshr_b32 s12, s12, 8
         s_mul_i32 s13, s12, 7
         s_sub_u32 s7, s11, s13
         s_lshr_b32 s13, s12, 1
         s_lshl_b32 s13, s13, 3
         s_add_u32 s13, s13, s10
         s_lshl_b32 s13, s13, 1
         s_and_b32 s6, s12, 1
         s_add_u32 s6, s6, s13
         s_cmp_lt_u32 s11, 28
         s_cselect_b32 s74, 1, 0
         v_and_b32 v1, 63, v0
         v_and_b32 v2, 15, v1
         v_lshrrev_b32 v3, 4, v1
         v_bfe_u32 v4, v1, 2, 2
         v_and_b32 v5, 3, v1
         v_lshrrev_b32 v6, 6, v0
         v_readfirstlane_b32 s5, v6
         s_mov_b32 s60, 0
         s_mov_b32 s61, 0xffff0000''')
    assert all((m * 37) >> 8 == m // 7 for m in range(32))
    m56, sh56 = magic_div(56, 448)
    for i in range(7):
        r = OFFS + i
        a('v_add_u32 v8, %d, v1' % (64 * i))
        a('v_mul_u32_u24 v9, %d, v8' % m56)
        a('v_lshrrev_b32 v9, %d, v9' % sh56)
        a('v_mul_u32_u24 v10, 56, v9')
        a('v_sub_u32 v8, v8, v10')
        a('v_lshrrev_b32 v10, 1, v9')
        a('v_xor_b32 v8, v8, v10')
        a('v_lshlrev_b32 v8, 4, v8')
        a('v_mul_u32_u24 v9, 896, v9')
        a('v_add_u32 v%d, v8, v9' % r)
    a('v_lshrrev_b32 v8, 1, v2')
    a('v_xor_b32 v8, v8, v3')
    a('v_mul_u32_u24 v9, 896, v2')
    a('v_lshl_add_u32 v%d, v8, 4, v9' % FAE)
    a('v_xor_b32 v8, 4, v8')
    a('v_lshl_add_u32 v%d, v8, 4, v9' % FAO)
    for i in range(4): a('v_mov_b32 v%d, 0x3f803f80' % (ONES + i))
    a('s_waitcnt lgkmcnt(0)')
    srd(76, 'dbg', 0, 256)
    srd(92, 'ws', FLAG_OFF, 16 * 4096)
    a('s_mov_b32 s90, 0'); a('s_mov_b32 s91, 0')
    a('s_or_b32 s10, s2, s5')
    a('s_cmp_lg_u32 s10, 0')
    a('s_cbranch_scc1 L_notag')
    a('s_memrealtime s[10:11]')
    a('s_waitcnt lgkmcnt(0)')
    a('s_or_b32 s10, s10, 1')
    a('v_mov_b32 v10, s10'); a('v_mov_b32 v11, s11'); a('v_mov_b32 v8, 0')
    a('s_mov_b64 exec, 1')
    a('buffer_store_dwordx2 v[10:11], v8, s[76:79], 0 offen sc1')
    a('s_mov_b64 exec, -1')
    a.label('L_notag')
    if STAMPS: srd(84, 'ws', 60 * MB, 4 * MB)
    a('s_mov_b32 s64, 0')
    a.flush_hazards(4)
    a.label('L_layer')
    a('s_lshl_b32 s10, s64, 25')
    a('s_add_u32 s66, s38, s10'); a('s_addc_u32 s67, s39, 0')
    a('s_add_u32 s10, s38, 0x%x' % WOFF['X2']); a('s_addc_u32 s11, s39, 0')
    a('s_cmp_eq_u32 s64, 0')
    a('s_cselect_b32 s68, s16, s10'); a('s_cselect_b32 s69, s17, s11')
    a('s_cselect_b32 s70, s10, s34'); a('s_cselect_b32 s71, s11, s35')
    a('s_mul_i32 s72, s64, %d' % CNT_PER_LAYER)
    nstamp[0] = 0
    stamp()
    stage_S1()
    stage_S2a()
    lB = newlbl('skipB')
    a('s_cmp_eq_u32 s74, 0')
    a('s_cbranch_scc1 %s' % lB)
    def pf_w1():
        srd(40, 'w1', 0, D * D * 2); W_dma64(40, R1, D)
    def pf_w2():
        srd(40, 'w2', 0, D * D * 2); W_dma64(40, R0, D)
    stage_small('wo', R0, R1, 16, pf_w1)
    stage_small('w1', R1, R0, 23, pf_w2)
    def pf_w3():
        srd(40, 'w3', 0, D * F * 2); W_dma_generic(40, F * 2, D, 7, [(0, 224, 14)], S5_W)
    stage_small('w2', R0, R1, 30, pf_w3)
    a.label(lB)
    stage_S5()
    lB2 = newlbl('skipB')
    a('s_cmp_eq_u32 s74, 0')
    a('s_cbranch_scc1 %s' % lB2)
    stage_S6()
    a.label(lB2)
    a('s_add_u32 s64, s64, 1')
    a('s_cmp_lt_u32 s64, 2')
    a.flush_hazards(13)
    a('s_cbranch_scc1 L_layer')
    a.label('L_abort')
    a.label('L_end')
    a('s_endpgm')
    hdr = '; @launch grid=(256,1,1) block=(512,1,1) lds=%d\n' % LDS_TOTAL
    txt = hdr + '.amdgcn_target "amdgcn-amd-amdhsa--gfx950"\n.text\n' + a.text()
    txt += '''.section .rodata,"a"
.p2align 6
.amdhsa_kernel %s
  .amdhsa_next_free_vgpr 256
  .amdhsa_next_free_sgpr 100
  .amdhsa_accum_offset 256
  .amdhsa_group_segment_fixed_size 0
  .amdhsa_kernarg_size 96
  .amdhsa_user_sgpr_count 2
  .amdhsa_user_sgpr_kernarg_segment_ptr 1
  .amdhsa_system_sgpr_workgroup_id_x 1
.end_amdhsa_kernel
''' % KNAME
    return txt

if __name__ == '__main__':
    out = sys.argv[1] if len(sys.argv) > 1 else 'pers.s'
    open(out, 'w').write(build())
    print('written', out, 'nops', a.nops_inserted)
```

```python
import sys, os, struct
sys.path.insert(0, 'gen')
from asmlib import Asm

S, D, H, DH, F = 2048, 448, 16, 28, 1792
MB = 1 << 20
WOFF = dict(KVP=0, PHIQ=2 * MB, O=6 * MB, XP=8 * MB, HH=10 * MB, X1=12 * MB, STATS=14 * MB, G=16 * MB, X2=24 * MB)
SZ_X = S * D * 2
SZ_G = S * F * 2
SZ_KVP = 16 * 16 * 8192
SZ_STATS = S * 8
P = dict(x=16, wqkv=18, wphi=20, wo=22, bx=24, w1=26, w2=28, w3=30, w4=32, out=34, dbg=36, ws=38, lws=66, xsrc=68, xdst=70)
LOG2E = 1.4426950408889634
STAMPS = int(os.environ.get('STAMPS', '0'))
FAST = int(os.environ.get('FAST', '0'))
CUR = {'sc': ' sc1'}
KNAME = 'interleave_layers__linear_kernel_hedgehog__mixer_s_mlp__prompt_kernel'

def f32hex(x):
    return '0x%08x' % struct.unpack('<I', struct.pack('<f', x))[0]
def vr(b, n=4):
    return 'v[%d:%d]' % (b, b + n - 1)

ACT = 16
WST = 72
FRG = 128
ACC = 184
MISC = 212
OFFS = 236
FAE = 243; FAO = 244
TMPA = 245
PHQ = 248
R0 = 0; R1 = 57344; R2 = 114688
LDS_TOTAL = 163840
S1_W = 0; S1_WPHI = 86016; S1_ATR = 88064
S1_PHIK = S1_ATR; S1_VV = S1_ATR + 16384
S2A_KV = 150000 // 16 * 16
CNT_PER_LAYER = 60

a = Asm()
nstamp = [0]
def stamp():
    if not STAMPS: return
    i = nstamp[0]
    a('s_waitcnt lgkmcnt(0)')
    a('s_memtime s[80:81]')
    a('s_waitcnt lgkmcnt(0)')
    a('v_mov_b32 v%d, s80' % TMPA)
    a('s_lshl_b32 s82, s2, 10')
    a('s_lshl_b32 s83, s64, 8')
    a('s_add_u32 s82, s82, s83')
    a('s_lshl_b32 s83, s5, 9')
    a('s_add_u32 s82, s82, s83')
    a('v_mov_b32 v%d, s82' % (TMPA + 1))
    a('s_cmp_gt_u32 s5, 1')
    a('s_cbranch_scc1 L_nost_%d' % i)
    a('s_mov_b64 exec, 1')
    a('buffer_store_dword v%d, v%d, s[84:87], 0 offen offset:%d' % (TMPA, TMPA + 1, 4 * (i % 64)))
    a('s_mov_b64 exec, -1')
    a.label('L_nost_%d' % i)
    nstamp[0] += 1

def srd(d, ptr, off, size):
    p = P[ptr]
    if off:
        a('s_add_u32 s%d, s%d, 0x%x' % (d, p, off))
        a('s_addc_u32 s%d, s%d, 0' % (d + 1, p + 1))
    else:
        a('s_mov_b32 s%d, s%d' % (d, p))
        a('s_mov_b32 s%d, s%d' % (d + 1, p + 1))
    a('s_mov_b32 s%d, 0x%x' % (d + 2, size))
    a('s_mov_b32 s%d, 0x00020000' % (d + 3))
def lsrd(d, name, size):
    srd(d, 'lws', WOFF[name], size)

def magic_div(d, maxv):
    for sh in range(8, 24):
        m = -(-(1 << sh) // d)
        if all((t * m) >> sh == t // d for t in range(maxv)) and m * maxv < (1 << 32) and m < (1 << 24):
            return m, sh
    raise ValueError

class DsBase:
    def __init__(self, reg, extra_regs):
        self.reg = reg; self.extra = list(extra_regs); self.made = {}
    def prep(self, maxoff):
        k = 1
        while maxoff >= k * 61440:
            r = self.extra[k - 1]
            a('v_add_u32 v%d, 0x%x, v%d' % (r, k * 61440, self.reg))
            self.made[k] = r
            k += 1
    def at(self, off):
        k = off // 61440
        r = self.reg if k == 0 else self.made[k]
        return 'v%d' % r, off - k * 61440

lblc = [0]
def newlbl(p):
    lblc[0] += 1
    return 'L_%s_%d' % (p, lblc[0])

FLAG_OFF = 56 * MB
def get_tag():
    l = newlbl('gt'); lp = newlbl('gtp')
    a('s_cmp_lg_u32 s5, 0')
    a('s_cbranch_scc1 %s' % l)
    a('s_cmp_lg_u32 s90, 0')
    a('s_cbranch_scc1 %s' % l)
    a('v_mov_b32 v8, 0')
    a('s_mov_b32 s15, 0')
    a.flush_hazards(4)
    a.label(lp)
    a('buffer_load_dwordx2 v[10:11], v8, s[76:79], 0 offen sc1')
    a('s_waitcnt vmcnt(0)')
    a('v_readfirstlane_b32 s90, v10')
    a('v_readfirstlane_b32 s91, v11')
    a('s_add_u32 s15, s15, 1')
    a('s_cmp_gt_u32 s15, 0x40000')
    a('s_cbranch_scc1 L_abort')
    a('s_cmp_lg_u32 s90, 0')
    a('s_cbranch_scc1 %s' % l)
    a('s_sleep 2')
    a('s_branch %s' % lp)
    a.label(l)

def flag_addr(stage, groups, slot_expr):
    pass

def signal(stage, groups, slot):
    a('s_waitcnt vmcnt(0) lgkmcnt(0)')
    a('s_barrier')
    l = newlbl('sig')
    a('s_cmp_lg_u32 s5, 0')
    a('s_cbranch_scc1 %s' % l)
    a('v_mov_b32 v8, %s' % groups[0])
    if len(groups) > 1:
        a('v_mov_b32 v9, %s' % groups[1])
        a('v_cmp_eq_u32 vcc, 1, v1')
        a('v_cndmask_b32 v8, v8, v9, vcc')
    a('s_lshl_b32 s10, s64, 3')
    a('s_add_u32 s10, s10, %d' % stage)
    a('s_lshl_b32 s10, s10, 12')
    a('s_lshl_b32 s11, %s, 3' % slot)
    a('s_add_u32 s10, s10, s11')
    a('v_lshlrev_b32 v8, 7, v8')
    a('v_add_u32 v8, s10, v8')
    a('v_mov_b32 v10, s90')
    a('v_mov_b32 v11, s91')
    a('s_mov_b64 exec, %d' % ((1 << len(groups)) - 1))
    a('buffer_store_dwordx2 v[10:11], v8, s[92:95], 0 offen' + CUR['sc'])
    a('s_mov_b64 exec, -1')
    a.label(l)

def wait_dep(stage, groups, nslots, prev_layer=False):
    l = newlbl('wd'); lp = newlbl('poll')
    a('s_cmp_lg_u32 s5, 0')
    a('s_cbranch_scc1 %s' % l)
    a('v_mov_b32 v8, %s' % groups[0])
    for i in range(1, len(groups)):
        a('v_mov_b32 v9, %s' % groups[i])
        a('v_cmp_eq_u32 vcc, %d, v3' % i)
        a('v_cndmask_b32 v8, v8, v9, vcc')
    a('s_lshl_b32 s10, s64, 3')
    a('s_add_u32 s10, s10, %d' % (stage - (8 if prev_layer else 0)))
    a('s_lshl_b32 s10, s10, 12')
    a('v_lshlrev_b32 v8, 7, v8')
    a('v_lshl_add_u32 v8, v2, 3, v8')
    a('v_add_u32 v8, s10, v8')
    msk = 0
    for i in range(len(groups)): msk |= ((1 << nslots) - 1) << (16 * i)
    a('s_mov_b32 exec_lo, 0x%x' % (msk & 0xffffffff))
    a('s_mov_b32 exec_hi, 0x%x' % (msk >> 32))
    a('s_mov_b32 s15, 0')
    a.flush_hazards(6)
    a.label(lp)
    a('buffer_load_dwordx2 v[10:11], v8, s[92:95], 0 offen sc1')
    a('s_waitcnt vmcnt(0)')
    a('v_cmp_ne_u64 vcc, s[90:91], v[10:11]')
    a('s_add_u32 s15, s15, 1')
    a('s_cmp_gt_u32 s15, 0x40000')
    a('s_cbranch_scc1 L_abort')
    a('s_cmp_eq_u64 vcc, 0')
    a.flush_hazards(3)
    a('s_cbranch_scc1 %s_done' % lp)
    a('s_sleep 1')
    a('s_branch %s' % lp)
    a.label('%s_done' % lp)
    a('s_mov_b64 exec, -1')
    a.label(l)
    a('s_barrier')

def w_stage_issue(srdn, wstride, K, NT, R, segs, tmp, dst=WST):
    CH = 2 * NT
    used = R * CH
    rounds = K // R
    m, sh = magic_div(CH, 512)
    t0, t1 = tmp, tmp + 1
    a('v_min_u32 v%d, %d, v0' % (t0, used - 1))
    a('v_mul_u32_u24 v%d, %d, v%d' % (t1, m, t0))
    a('v_lshrrev_b32 v%d, %d, v%d' % (t1, sh, t1))
    a('v_mul_u32_u24 v%d, %d, v%d' % (tmp + 2, CH, t1))
    a('v_sub_u32 v%d, v%d, v%d' % (t0, t0, tmp + 2))
    a('s_mov_b32 s10, %d' % wstride)
    a('v_mul_lo_u32 v%d, v%d, s10' % (tmp + 2, t1))
    if len(segs) == 1:
        imm, jmul, _ = segs[0]
        a('s_mul_i32 s10, s4, %d' % jmul)
        a('v_lshlrev_b32 v%d, 4, v%d' % (tmp + 3, t0))
        a('v_add3_u32 v%d, v%d, v%d, s10' % (tmp + 2, tmp + 2, tmp + 3))
    else:
        segstride = segs[1][0] - segs[0][0]
        jmul = segs[0][1]
        a('s_mul_i32 s10, s4, %d' % jmul)
        a('v_lshrrev_b32 v%d, 2, v%d' % (tmp + 3, t0))
        a('v_mul_u32_u24 v%d, %d, v%d' % (tmp + 3, segstride, tmp + 3))
        a('v_add3_u32 v%d, v%d, v%d, s10' % (tmp + 2, tmp + 2, tmp + 3))
        a('v_and_b32 v%d, 3, v%d' % (tmp + 3, t0))
        a('v_lshlrev_b32 v%d, 4, v%d' % (tmp + 3, tmp + 3))
        a('v_add_u32 v%d, v%d, v%d' % (tmp + 2, tmp + 2, tmp + 3))
    for i in range(rounds):
        a('s_mov_b32 s10, 0x%x' % (i * R * wstride))
        a('buffer_load_dwordx4 %s, v%d, s[%d:%d], s10 offen' % (vr(dst + 4 * i), tmp + 2, srdn, srdn + 3))
    RS = 32 * NT
    a('v_bfe_u32 v%d, v%d, 3, 1' % (tmp + 2, t1))
    a('v_lshrrev_b32 v%d, 1, v%d' % (tmp + 3, t0))
    if NT % 2:
        a('v_cmp_gt_u32 vcc, %d, v%d' % (NT - 1, tmp + 3))
        a('v_cndmask_b32 v%d, 0, v%d, vcc' % (tmp + 2, tmp + 2))
    a('v_xor_b32 v%d, v%d, v%d' % (tmp + 2, tmp + 2, tmp + 3))
    a('v_lshlrev_b32 v%d, 5, v%d' % (tmp + 2, tmp + 2))
    a('v_and_b32 v%d, 1, v%d' % (tmp + 3, t0))
    a('v_lshlrev_b32 v%d, 4, v%d' % (tmp + 3, tmp + 3))
    a('v_mul_u32_u24 v%d, %d, v%d' % (t1, RS, t1))
    a('v_add3_u32 v%d, v%d, v%d, v%d' % (t1, t1, tmp + 2, tmp + 3))
    return rounds

def w_stage_write(rounds, NT, R, ldsbase, addr_reg, extra, pending_after, src=WST):
    RS = 32 * NT
    if ldsbase:
        a('v_add_u32 v%d, 0x%x, v%d' % (addr_reg, ldsbase, addr_reg))
    db = DsBase(addr_reg, extra)
    db.prep((rounds - 1) * R * RS)
    for i in range(rounds):
        a('s_waitcnt vmcnt(%d)' % min(63, rounds - 1 - i + pending_after))
        r, o = db.at(i * R * RS)
        a('ds_write_b128 %s, %s offset:%d' % (r, vr(src + 4 * i), o))

def W_dma_generic(srdn, wstride, K, NT, segs, ldsbase):
    CH = 2 * NT
    NCH = K * CH
    ninstr = -(-NCH // 64)
    m, sh = magic_div(CH, ninstr * 64 + 512)
    if len(segs) == 1: a('s_mul_i32 s11, s4, %d' % segs[0][1])
    else: a('s_mul_i32 s11, s4, %d' % segs[0][1])
    a('s_lshl_b32 s12, s5, 10')
    a('s_add_u32 s12, s12, %d' % ldsbase)
    a('s_lshl_b32 s10, s5, 6')
    a('v_add_u32 v12, s10, v1')
    for i in range(-(-ninstr // 8)):
        lsk = None
        if i * 8 + 7 >= ninstr:
            lsk = newlbl('wdg')
            a('s_cmp_ge_u32 s5, %d' % (ninstr - i * 8))
            a('s_cbranch_scc1 %s' % lsk)
        a('v_add_u32 v8, %d, v12' % (i * 512))
        a('v_mul_u32_u24 v9, %d, v8' % m)
        a('v_lshrrev_b32 v9, %d, v9' % sh)
        a('v_mul_u32_u24 v10, %d, v9' % CH)
        a('v_sub_u32 v8, v8, v10')
        a('v_bfe_u32 v10, v9, 3, 1')
        a('v_lshrrev_b32 v11, 1, v8')
        if NT % 2:
            a('v_cmp_gt_u32 vcc, %d, v11' % (NT - 1))
            a('v_cndmask_b32 v10, 0, v10, vcc')
        a('v_lshlrev_b32 v10, 1, v10')
        a('v_xor_b32 v8, v8, v10')
        a('s_mov_b32 s10, %d' % wstride)
        a('v_mul_lo_u32 v9, v9, s10')
        if len(segs) == 1:
            a('v_lshl_add_u32 v9, v8, 4, v9')
        else:
            segstride = segs[1][0] - segs[0][0]
            a('v_lshrrev_b32 v10, 2, v8')
            a('v_mul_u32_u24 v10, %d, v10' % segstride)
            a('v_and_b32 v8, 3, v8')
            a('v_lshlrev_b32 v8, 4, v8')
            a('v_add3_u32 v9, v9, v10, v8')
        a('s_add_u32 m0, s12, %d' % (i * 8192))
        a('buffer_load_dwordx4 v9, s[%d:%d], s11 offen lds' % (srdn, srdn + 3))
        if lsk: a.label(lsk)

def allreduce_g(x, t, op):
    a('v_mov_b32 v%d, v%d' % (t, x))
    a('v_permlane16_swap_b32 v%d, v%d' % (x, t))
    a('%s v%d, v%d, v%d' % (op, x, x, t))
    a('v_mov_b32 v%d, v%d' % (t, x))
    a('v_permlane32_swap_b32 v%d, v%d' % (x, t))
    a('%s v%d, v%d, v%d' % (op, x, x, t))

def layernorm(mode, tmp):
    s0, s1, q0, q1, one = tmp, tmp + 1, tmp + 2, tmp + 3, tmp + 4
    a('v_mov_b32 v%d, 0x3f803f80' % one)
    for r in (s0, s1, q0, q1): a('v_mov_b32 v%d, 0' % r)
    for i in range(56):
        x = ACT + i
        a('v_dot2_f32_bf16 v%d, v%d, v%d, v%d' % ((s0, s1)[i & 1], x, one, (s0, s1)[i & 1]))
        a('v_dot2_f32_bf16 v%d, v%d, v%d, v%d' % ((q0, q1)[i & 1], x, x, (q0, q1)[i & 1]))
    a('v_add_f32 v%d, v%d, v%d' % (s0, s0, s1))
    a('v_add_f32 v%d, v%d, v%d' % (q0, q0, q1))
    allreduce_g(s0, tmp + 5, 'v_add_f32')
    allreduce_g(q0, tmp + 5, 'v_add_f32')
    a('v_mul_f32 v%d, %s, v%d' % (s0, f32hex(1.0 / D), s0))
    a('v_mul_f32 v%d, %s, v%d' % (q0, f32hex(1.0 / D), q0))
    a('v_fma_f32 v%d, -v%d, v%d, v%d' % (q0, s0, s0, q0))
    a('v_max_f32 v%d, 0, v%d' % (q0, q0))
    a('v_add_f32 v%d, %s, v%d' % (s1, f32hex(1e-5), q0))
    a('v_rsq_f32 v%d, v%d' % (s1, s1))
    sc = s1
    if mode == 2:
        a('v_mul_f32 v%d, v%d, v%d' % (q1, s1, s1))
        a('v_mul_f32 v%d, v%d, v%d' % (q1, q1, q0))
        a('v_add_f32 v%d, %s, v%d' % (q1, f32hex(1e-5), q1))
        a('v_rsq_f32 v%d, v%d' % (q1, q1))
        a('v_mul_f32 v%d, v%d, v%d' % (q1, q1, s1))
        sc = q1
    p = tmp + 6
    assert p % 2 == 0
    a('v_mov_b32 v%d, v%d' % (p, sc)); a('v_mov_b32 v%d, v%d' % (p + 1, sc))
    a('v_mul_f32 v%d, v%d, v%d' % (p + 2, s0, sc)); a('v_sub_f32 v%d, 0, v%d' % (p + 2, p + 2)); a('v_mov_b32 v%d, v%d' % (p + 3, p + 2))
    u = tmp + 10
    for i in range(56):
        x = ACT + i
        uu = u + 2 * (i & 1)
        a('v_lshlrev_b32 v%d, 16, v%d' % (uu, x))
        a('v_and_b32 v%d, 0xffff0000, v%d' % (uu + 1, x))
        a('v_pk_fma_f32 v[%d:%d], v[%d:%d], v[%d:%d], v[%d:%d]' % (uu, uu + 1, uu, uu + 1, p, p + 1, p + 2, p + 3))
        a('v_cvt_pk_bf16_f32 v%d, v%d, v%d' % (x, uu, uu + 1))

CS = 163328
ONES = 232
def ln_stats(mode, tmp):
    s0, s1, q0, q1 = tmp, tmp + 1, tmp + 2, tmp + 3
    for r in (s0, s1, q0, q1): a('v_mov_b32 v%d, 0' % r)
    for i in range(56):
        x = ACT + i
        a('v_dot2_f32_bf16 v%d, v%d, v%d, v%d' % ((s0, s1)[i & 1], x, ONES, (s0, s1)[i & 1]))
        a('v_dot2_f32_bf16 v%d, v%d, v%d, v%d' % ((q0, q1)[i & 1], x, x, (q0, q1)[i & 1]))
    a('v_add_f32 v%d, v%d, v%d' % (s0, s0, s1))
    a('v_add_f32 v%d, v%d, v%d' % (q0, q0, q1))
    allreduce_g(s0, tmp + 5, 'v_add_f32')
    allreduce_g(q0, tmp + 5, 'v_add_f32')
    a('v_mul_f32 v%d, %s, v%d' % (s0, f32hex(1.0 / D), s0))
    a('v_mul_f32 v%d, %s, v%d' % (q0, f32hex(1.0 / D), q0))
    a('v_fma_f32 v%d, -v%d, v%d, v%d' % (q0, s0, s0, q0))
    a('v_max_f32 v%d, 0, v%d' % (q0, q0))
    a('v_add_f32 v%d, %s, v%d' % (s1, f32hex(1e-5), q0))
    a('v_rsq_f32 v%d, v%d' % (s1, s1))
    if mode == 2:
        a('v_mul_f32 v%d, v%d, v%d' % (q1, s1, s1))
        a('v_mul_f32 v%d, v%d, v%d' % (q1, q1, q0))
        a('v_add_f32 v%d, %s, v%d' % (q1, f32hex(1e-5), q1))
        a('v_rsq_f32 v%d, v%d' % (q1, q1))
        a('v_mul_f32 v%d, v%d, v%d' % (q0, q1, s1))
    else:
        a('v_mov_b32 v%d, v%d' % (q0, s1))
    a('v_mul_f32 v%d, v%d, v%d' % (q1, s0, q0))
    a('v_sub_f32 v%d, 0, v%d' % (q1, q1))

def colsum_prepass(NT, wbase, typeB):
    RS = 128 if typeB else 32 * NT
    l = newlbl('cs')
    a('s_sub_u32 s10, s5, 1')
    a('s_cmp_ge_u32 s10, %d' % NT)
    a('s_cbranch_scc1 %s' % l)
    a('v_lshl_add_u32 v8, v3, 3, v4')
    a('v_mul_u32_u24 v8, %d, v8' % RS)
    a('v_lshl_add_u32 v8, v5, 3, v8')
    if typeB:
        a('v_lshrrev_b32 v9, 1, v4')
        a('v_and_b32 v10, 1, v3')
        a('v_lshl_or_b32 v9, v10, 1, v9')
    else:
        a('v_and_b32 v9, 1, v3')
        if NT % 2:
            a('s_cmp_eq_u32 s10, %d' % (NT - 1))
            a('s_cselect_b32 s11, 0, 1')
            a('v_and_b32 v9, s11, v9')
    a('v_xor_b32 v9, s10, v9')
    a('v_lshl_add_u32 v8, v9, 5, v8')
    a('v_add_u32 v8, %d, v8' % wbase)
    a('v_add_u32 v9, 61440, v8')
    for i in range(4): a('v_mov_b32 v%d, 0' % (12 + i))
    B0 = FRG
    for t in range(14):
        for h in range(2):
            off = (32 * t + 4 * h) * RS
            if off >= 61440: a('ds_read_b64_tr_b16 v[%d:%d], v9 offset:%d' % (B0 + 4 * t + 2 * h, B0 + 4 * t + 2 * h + 1, off - 61440))
            else: a('ds_read_b64_tr_b16 v[%d:%d], v8 offset:%d' % (B0 + 4 * t + 2 * h, B0 + 4 * t + 2 * h + 1, off))
        if t == 6 or t == 13:
            a('s_waitcnt lgkmcnt(0)')
            for tt in range(t - 6, t + 1):
                a('v_mfma_f32_16x16x32_bf16 v[12:15], %s, %s, v[12:15]' % (vr(B0 + 4 * tt), vr(ONES)))
    a('s_lshl_b32 s10, s10, 6')
    a('v_lshlrev_b32 v8, 4, v3')
    a('v_add_u32 v8, s10, v8')
    a('v_add_u32 v8, %d, v8' % CS)
    a('s_mov_b32 exec_lo, 0x00010001'); a('s_mov_b32 exec_hi, 0x00010001')
    a('ds_write_b128 v8, v[12:15]')
    a('s_mov_b64 exec, -1')
    a('s_waitcnt lgkmcnt(0)')
    a.label(l)

def cs_read(tiles, dst, tile0_sgpr=None):
    a('v_lshlrev_b32 v9, 4, v3')
    if tile0_sgpr:
        a('s_lshl_b32 s10, %s, 7' % tile0_sgpr)
        a('v_add_u32 v9, s10, v9')
    a('v_add_u32 v9, %d, v9' % CS)
    for i, T in enumerate(tiles):
        a('ds_read_b128 %s, v9 offset:%d' % (vr(dst + 4 * i), 64 * T))

def ln_apply(acc, n, cs, st):
    for i in range(n):
        a('v_mul_f32 v%d, v%d, v%d' % (acc + i, acc + i, st + 2))
        a('v_fmac_f32 v%d, v%d, v%d' % (acc + i, cs + i, st + 3))

def gemm_setup_addr(NT, ldsbase, tmp, extra_e, extra_o, K, plain=None):
    RS = 32 * NT
    a('v_lshl_add_u32 v%d, v3, 3, v4' % tmp)
    a('v_mul_u32_u24 v%d, %d, v%d' % (tmp, RS, tmp))
    a('v_lshl_add_u32 v%d, v5, 3, v%d' % (tmp, tmp))
    if ldsbase: a('v_add_u32 v%d, 0x%x, v%d' % (tmp, ldsbase, tmp))
    dp = None
    if plain is not None:
        a('v_mov_b32 v%d, v%d' % (plain[0], tmp))
        dp = DsBase(plain[0], plain[1:]); dp.prep(K * RS)
    a('v_and_b32 v%d, 1, v3' % (tmp + 1))
    a('v_lshlrev_b32 v%d, 5, v%d' % (tmp + 1, tmp + 1))
    a('v_sub_u32 v%d, v%d, v%d' % (tmp + 2, tmp, tmp + 1))
    a('v_add_u32 v%d, v%d, v%d' % (tmp, tmp, tmp + 1))
    a('v_mov_b32 v%d, v%d' % (tmp + 1, tmp + 2))
    de = DsBase(tmp, extra_e); do = DsBase(tmp + 1, extra_o)
    de.prep(K * RS); do.prep(K * RS)
    de.plain = dp
    return de, do

def gemm_reads(de, do, NT, t, fr):
    RS = 32 * NT
    for T in range(NT):
        for h in range(2):
            b = de if T % 2 == 0 else do
            if NT % 2 and T == NT - 1: b = de.plain
            r, o = b.at((32 * t + 4 * h) * RS + 32 * T)
            a('ds_read_b64_tr_b16 v[%d:%d], %s offset:%d' % (fr + 4 * T + 2 * h, fr + 4 * T + 2 * h + 1, r, o))

def gemm_loop(de, do, NT, steps, acc=ACC, frg=FRG):
    fsz = 4 * NT
    for i in range(4 * NT): a('v_mov_b32 v%d, 0' % (acc + i))
    gemm_reads(de, do, NT, 0, frg)
    for t in range(steps):
        cur = frg + fsz * (t & 1); nxt = frg + fsz * ((t + 1) & 1)
        if t + 1 < steps:
            gemm_reads(de, do, NT, t + 1, nxt)
            a('s_waitcnt lgkmcnt(%d)' % min(15, 2 * NT))
        else:
            a('s_waitcnt lgkmcnt(0)')
        for T in range(NT):
            a('v_mfma_f32_16x16x32_bf16 %s, %s, %s, %s' % (vr(acc + 4 * T), vr(cur + 4 * T), vr(ACT + 4 * t), vr(acc + 4 * T)))

def gelu(x, t):
    ca = -2 * LOG2E * 0.7978845608028654
    cb = ca * 0.044715
    a('v_mul_f32 v%d, v%d, v%d' % (t, x, x))
    a('v_mov_b32 v%d, %s' % (t + 1, f32hex(ca)))
    a('v_fmac_f32 v%d, %s, v%d' % (t + 1, f32hex(cb), t))
    a('v_mul_f32 v%d, v%d, v%d' % (t, t + 1, x))
    a('v_exp_f32 v%d, v%d' % (t, t))
    a('v_add_f32 v%d, 1.0, v%d' % (t, t))
    a('v_rcp_f32 v%d, v%d' % (t, t))
    a('v_mul_f32 v%d, v%d, v%d' % (x, x, t))

def unpack4(src, dst):
    a('v_lshlrev_b32 v%d, 16, v%d' % (dst, src))
    a('v_and_b32 v%d, 0xffff0000, v%d' % (dst + 1, src))
    a('v_lshlrev_b32 v%d, 16, v%d' % (dst + 2, src + 1))
    a('v_and_b32 v%d, 0xffff0000, v%d' % (dst + 3, src + 1))

def typeA_rows():
    a('s_lshl_b32 s8, s3, 7')
    a('s_lshl_b32 s9, s5, 4')
    a('s_add_u32 s8, s8, s9')
    a('v_add_u32 v7, s8, v2')

def A_regs_path(srdn, atr):
    a('s_mul_i32 s10, s8, 896')
    a('v_lshlrev_b32 v8, 4, v1')
    a('v_add_u32 v8, s10, v8')
    for i in range(14):
        a('s_mov_b32 s10, %d' % (i * 1024))
        a('buffer_load_dwordx4 %s, v8, s[%d:%d], s10 offen' % (vr(WST + 4 * i), srdn, srdn + 3))
    a('s_mul_i32 s11, s5, 7168')
    a('s_add_u32 s11, s11, %d' % atr)
    a('v_and_b32 v9, 8, v2')
    a('v_mul_u32_u24 v9, 896, v9')
    a('v_sub_u32 v10, v%d, v9' % FAE)
    a('v_sub_u32 v11, v%d, v9' % FAO)
    a('v_add_u32 v10, s11, v10')
    a('v_add_u32 v11, s11, v11')
    for ph in range(2):
        for i in range(7):
            if ph == 0:
                a('v_add_u32 v%d, s11, v%d' % (MISC + i, OFFS + i))
            else:
                a('v_xor_b32 v%d, 64, v%d' % (MISC + i, OFFS + i))
                a('v_add_u32 v%d, s11, v%d' % (MISC + i, MISC + i))
        for i in range(7):
            a('s_waitcnt vmcnt(%d)' % (13 - (7 * ph + i)))
            a('ds_write_b128 v%d, %s' % (MISC + i, vr(WST + 4 * (7 * ph + i))))
        a('s_waitcnt lgkmcnt(0)')
        if ph == 0:
            a('s_mov_b32 exec_lo, 0x00ff00ff'); a('s_mov_b32 exec_hi, 0x00ff00ff')
        else:
            a('s_mov_b32 exec_lo, 0xff00ff00'); a('s_mov_b32 exec_hi, 0xff00ff00')
        for t in range(14):
            a('ds_read_b128 %s, v%d offset:%d' % (vr(ACT + 4 * t), 10 + (t & 1), (t >> 1) * 128))
        a('s_waitcnt lgkmcnt(0)')
        a('s_mov_b64 exec, -1')

def typeB_rows():
    a('s_lshl_b32 s8, s6, 6')
    a('s_lshr_b32 s9, s5, 1')
    a('s_lshl_b32 s9, s9, 4')
    a('s_add_u32 s8, s8, s9')
    a('v_add_u32 v7, s8, v2')
    a('s_and_b32 s13, s5, 1')

def A_dma_addr(shifted=False):
    a('s_lshl_b32 s10, s6, 6')
    a('s_lshl_b32 s11, s5, 3')
    a('s_add_u32 s10, s10, s11')
    a('s_mul_i32 s10, s10, 896')
    a('s_and_b32 s11, s5, 1')
    a('s_lshl_b32 s11, s11, 6')
    for i in range(7):
        r = MISC + i
        a('v_xor_b32 v%d, s11, v%d' % (r, OFFS + i))
        if shifted:
            m56_, sh56_ = magic_div(56, 448)
            m14_, sh14_ = magic_div(14, 64)
            a('v_lshrrev_b32 v%d, 4, v%d' % (MISC + 11, r))
            a('v_mul_u32_u24 v%d, %d, v%d' % (MISC + 8, m56_, MISC + 11))
            a('v_lshrrev_b32 v%d, %d, v%d' % (MISC + 8, sh56_, MISC + 8))
            a('v_mul_u32_u24 v%d, 56, v%d' % (MISC + 8, MISC + 8))
            a('v_sub_u32 v%d, v%d, v%d' % (MISC + 8, MISC + 11, MISC + 8))
            a('v_mul_u32_u24 v%d, %d, v%d' % (MISC + 8, m14_, MISC + 8))
            a('v_lshrrev_b32 v%d, %d, v%d' % (MISC + 8, sh14_, MISC + 8))
            a('v_lshrrev_b32 v%d, 1, v%d' % (MISC + 9, MISC + 8))
            a('v_add_u32 v%d, 1, v%d' % (MISC + 9, MISC + 9))
            a('v_mul_u32_u24 v%d, 896, v%d' % (MISC + 9, MISC + 9))
            a('v_and_b32 v%d, 1, v%d' % (MISC + 8, MISC + 8))
            a('v_cmp_eq_u32 vcc, 1, v%d' % (MISC + 8))
            a('v_sub_u32 v%d, 0, v%d' % (MISC + 10, MISC + 9))
            a('v_cndmask_b32 v%d, v%d, v%d, vcc' % (MISC + 9, MISC + 10, MISC + 9))
            a('v_add_u32 v%d, v%d, v%d' % (r, r, MISC + 9))
        a('v_add_u32 v%d, s10, v%d' % (r, r))

def A_dma_issue(srdn, areg):
    a('s_mul_i32 s12, s5, 7168')
    a('s_add_u32 s12, s12, %d' % areg)
    for i in range(7):
        a('s_add_u32 m0, s12, %d' % (i * 1024))
        a('buffer_load_dwordx4 v%d, s[%d:%d], 0 offen lds' % (MISC + i, srdn, srdn + 3))

def A_frag_read(areg):
    a('s_lshr_b32 s10, s5, 1')
    a('s_mul_i32 s10, s10, 14336')
    a('s_add_u32 s10, s10, %d' % areg)
    a('v_add_u32 v10, s10, v%d' % FAE)
    a('v_add_u32 v11, s10, v%d' % FAO)
    for t in range(14):
        a('ds_read_b128 %s, v%d offset:%d' % (vr(ACT + 4 * t), 10 + (t & 1), (t >> 1) * 128))

def W_dma64(srdn, wreg, K, krow0=0, wstride=896):
    a('v_lshrrev_b32 v8, 3, v1')
    a('s_lshl_b32 s10, s5, 3')
    a('v_add_u32 v8, s10, v8')
    a('s_mov_b32 s10, %d' % wstride)
    a('v_mul_lo_u32 v8, v8, s10')
    a('v_bfe_u32 v9, v1, 4, 1')
    a('s_and_b32 s10, s5, 1')
    a('s_lshl_b32 s10, s10, 1')
    a('v_or_b32 v9, s10, v9')
    a('v_bfe_u32 v10, v1, 1, 2')
    a('v_xor_b32 v9, v9, v10')
    a('v_lshlrev_b32 v9, 5, v9')
    a('v_and_b32 v10, 1, v1')
    a('v_lshlrev_b32 v10, 4, v10')
    a('v_add3_u32 v8, v8, v9, v10')
    a('s_lshl_b32 s10, s7, 7')
    a('s_add_u32 s10, s10, %d' % (krow0 * wstride))
    a('v_add_u32 v8, s10, v8')
    a('s_lshl_b32 s12, s5, 10')
    a('s_add_u32 s12, s12, %d' % wreg)
    for i in range(K // 64):
        a('s_add_u32 m0, s12, %d' % (i * 8192))
        a('s_mov_b32 s10, %d' % (i * 64 * wstride))
        a('buffer_load_dwordx4 v8, s[%d:%d], s10 offen lds' % (srdn, srdn + 3))

def tr_bases64(wreg, r0):
    a('v_lshl_add_u32 v%d, v3, 3, v4' % r0)
    a('v_lshlrev_b32 v%d, 7, v%d' % (r0, r0))
    a('v_lshl_add_u32 v%d, v5, 3, v%d' % (r0, r0))
    a('v_add_u32 v%d, %d, v%d' % (r0, wreg, r0))
    a('v_lshrrev_b32 v%d, 1, v4' % (r0 + 2))
    a('v_and_b32 v%d, 1, v3' % (r0 + 3))
    a('v_lshl_or_b32 v%d, v%d, 1, v%d' % (r0 + 2, r0 + 3, r0 + 2))
    a('s_lshl_b32 s10, s13, 1')
    a('v_xor_b32 v%d, s10, v%d' % (r0 + 3, r0 + 2))
    a('v_lshl_add_u32 v%d, v%d, 5, v%d' % (r0 + 1, r0 + 3, r0))
    a('v_xor_b32 v%d, 1, v%d' % (r0 + 3, r0 + 3))
    a('v_lshl_add_u32 v%d, v%d, 5, v%d' % (r0 + 3, r0 + 3, r0))
    a('v_mov_b32 v%d, v%d' % (r0, r0 + 1))
    a('v_mov_b32 v%d, v%d' % (r0 + 1, r0 + 3))

def gemm64(rb, steps=14):
    def reads(t, fr):
        for T in range(2):
            for h in range(2):
                a('ds_read_b64_tr_b16 v[%d:%d], v%d offset:%d' % (fr + 4 * T + 2 * h, fr + 4 * T + 2 * h + 1, rb + T, (32 * t + 4 * h) * 128))
    for i in range(8): a('v_mov_b32 v%d, 0' % (ACC + i))
    reads(0, FRG); reads(1, FRG + 8)
    for t in range(steps):
        cur = FRG + 8 * (t % 3)
        if t + 2 < steps:
            reads(t + 2, FRG + 8 * ((t + 2) % 3))
            a('s_waitcnt lgkmcnt(8)')
        elif t + 1 < steps:
            a('s_waitcnt lgkmcnt(4)')
        else:
            a('s_waitcnt lgkmcnt(0)')
        for T in range(2):
            a('v_mfma_f32_16x16x32_bf16 %s, %s, %s, %s' % (vr(ACC + 4 * T), vr(cur + 4 * T), vr(ACT + 4 * t), vr(ACC + 4 * T)))

def swap16(pk):
    a('v_permlane16_swap_b32 v%d, v%d' % (pk, pk + 2))
    a('v_permlane16_swap_b32 v%d, v%d' % (pk + 1, pk + 3))

def st16_addr(dst, src):
    a('v_lshlrev_b32 v%d, 3, v3' % dst)
    a('v_sub_u32 v%d, v%d, v%d' % (dst, src, dst))
    a('v_and_b32 v%d, 1, v3' % (TMPA))
    a('v_lshl_add_u32 v%d, v%d, 5, v%d' % (dst, TMPA, dst))
    a('v_lshrrev_b32 v%d, 1, v3' % (TMPA))
    a('v_lshl_add_u32 v%d, v%d, 4, v%d' % (dst, TMPA, dst))

def out_addrB(reg):
    a('s_mov_b32 s10, 896')
    a('v_mul_lo_u32 v%d, v7, s10' % reg)
    a('s_lshl_b32 s10, s7, 7')
    a('s_lshl_b32 s11, s13, 6')
    a('s_add_u32 s10, s10, s11')
    a('v_lshlrev_b32 v%d, 3, v3' % (reg + 1))
    a('v_add3_u32 v%d, v%d, v%d, s10' % (reg, reg, reg + 1))

def softmax_pair(p, outp, tmp):
    mx, mn, t, sp, sm = tmp, tmp + 1, tmp + 2, tmp + 3, tmp + 4
    em = tmp + 6
    for i in range(4):
        a('v_cndmask_b32 v%d, v%d, v%d, s[60:61]' % (p + 4 + i, p + 4 + i, p))
    a('v_max3_f32 v%d, v%d, v%d, v%d' % (mx, p, p + 1, p + 2))
    a('v_max3_f32 v%d, v%d, v%d, v%d' % (mx, mx, p + 3, p + 4))
    a('v_max3_f32 v%d, v%d, v%d, v%d' % (mx, mx, p + 5, p + 6))
    a('v_max_f32 v%d, v%d, v%d' % (mx, mx, p + 7))
    a('v_min3_f32 v%d, v%d, v%d, v%d' % (mn, p, p + 1, p + 2))
    a('v_min3_f32 v%d, v%d, v%d, v%d' % (mn, mn, p + 3, p + 4))
    a('v_min3_f32 v%d, v%d, v%d, v%d' % (mn, mn, p + 5, p + 6))
    a('v_min_f32 v%d, v%d, v%d' % (mn, mn, p + 7))
    allreduce_g(mx, t, 'v_max_f32')
    allreduce_g(mn, t, 'v_min_f32')
    a('v_mov_b32 v%d, %s' % (t, f32hex(LOG2E)))
    for i in range(8):
        a('v_sub_f32 v%d, v%d, v%d' % (em + i, mn, p + i))
        a('v_sub_f32 v%d, v%d, v%d' % (p + i, p + i, mx))
        a('v_mul_f32 v%d, v%d, v%d' % (em + i, em + i, t))
        a('v_mul_f32 v%d, v%d, v%d' % (p + i, p + i, t))
        a('v_exp_f32 v%d, v%d' % (em + i, em + i))
        a('v_exp_f32 v%d, v%d' % (p + i, p + i))
    for i in range(4, 8):
        a('v_cndmask_b32 v%d, v%d, 0, s[60:61]' % (p + i, p + i))
        a('v_cndmask_b32 v%d, v%d, 0, s[60:61]' % (em + i, em + i))
    a('v_add_f32 v%d, v%d, v%d' % (sp, p, p + 1)); a('v_add_f32 v%d, v%d, v%d' % (sm, em, em + 1))
    for i in range(2, 8):
        a('v_add_f32 v%d, v%d, v%d' % (sp, sp, p + i)); a('v_add_f32 v%d, v%d, v%d' % (sm, sm, em + i))
    allreduce_g(sp, t, 'v_add_f32')
    allreduce_g(sm, t, 'v_add_f32')
    a('v_rcp_f32 v%d, v%d' % (sp, sp)); a('v_rcp_f32 v%d, v%d' % (sm, sm))
    for i in range(8):
        a('v_mul_f32 v%d, v%d, v%d' % (p + i, p + i, sp))
        a('v_mul_f32 v%d, v%d, v%d' % (em + i, em + i, sm))
    for i in range(4):
        a('v_cvt_pk_bf16_f32 v%d, v%d, v%d' % (outp + i, p + 2 * i, p + 2 * i + 1))
        a('v_cvt_pk_bf16_f32 v%d, v%d, v%d' % (outp + 4 + i, em + 2 * i, em + 2 * i + 1))

def set_target(n):
    a('s_add_u32 s14, s72, %d' % n)

def stage_S1():
    CUR['sc'] = ' sc1'
    NT = 6
    typeA_rows()
    srd(40, 'wqkv', 0, D * 3 * D * 2)
    srd(44, 'xsrc', 0, SZ_X)
    srd(48, 'wphi', 0, H * DH * DH * 2)
    lsrd(52, 'KVP', SZ_KVP)
    a('v_and_b32 v8, 255, v0')
    a('v_lshrrev_b32 v9, 3, v8')
    a('v_and_b32 v10, 7, v8')
    a('v_mul_u32_u24 v11, 56, v9')
    a('v_lshl_add_u32 v11, v10, 3, v11')
    a('s_mul_i32 s10, s4, 1568')
    a('v_add_u32 v11, s10, v11')
    a('v_cmp_gt_u32 vcc, 28, v9')
    a('v_cmp_gt_u32 s[62:63], 7, v10')
    a('s_and_b64 vcc, vcc, s[62:63]')
    a('v_mov_b32 v12, 0x7fffffff')
    a('v_cndmask_b32 v11, v12, v11, vcc')
    a('buffer_load_dwordx2 v[%d:%d], v11, s[48:51], 0 offen' % (MISC + 4, MISC + 5))
    a('v_lshlrev_b32 v%d, 3, v8' % (MISC + 6))
    rounds = w_stage_issue(40, 3 * D * 2, D, NT, 32, [(0, 56, 4), (896, 56, 4), (1792, 56, 4)], 8)
    a('s_waitcnt vmcnt(%d)' % rounds)
    a('v_add_u32 v%d, 0x%x, v%d' % (MISC + 6, S1_WPHI, MISC + 6))
    a('ds_write_b64 v%d, v[%d:%d]' % (MISC + 6, MISC + 4, MISC + 5))
    w_stage_write(rounds, NT, 32, S1_W, 9, [MISC], 0)
    a('s_waitcnt lgkmcnt(0)')
    a('s_barrier')
    stamp()
    colsum_prepass(NT, S1_W, False)
    lz = newlbl('zi')
    a('s_or_b32 s10, s64, s5')
    a('s_cmp_lg_u32 s10, 0')
    a('s_cbranch_scc1 %s' % lz)
    get_tag()
    srd(56, 'ws', 0, 64 * MB)
    a('s_lshl_b32 s10, s4, 13'); a('s_lshl_b32 s11, s3, 9'); a('s_add_u32 s10, s10, s11')
    a('v_lshrrev_b32 v8, 5, v1'); a('v_lshlrev_b32 v8, 25, v8')
    a('v_and_b32 v9, 31, v1'); a('v_lshl_add_u32 v8, v9, 4, v8')
    a('v_add_u32 v8, s10, v8')
    for i in range(4): a('v_mov_b32 v%d, 0' % (12 + i))
    a('buffer_store_dwordx4 v[12:15], v8, s[56:59], 0 offen sc1')
    a('s_waitcnt vmcnt(0)')
    a('s_lshl_b32 s10, s4, 7'); a('s_lshl_b32 s11, s3, 3'); a('s_add_u32 s10, s10, s11'); a('s_add_u32 s10, s10, %d' % (7 * 4096))
    a('v_mov_b32 v8, s10'); a('v_mov_b32 v10, s90'); a('v_mov_b32 v11, s91')
    a('s_mov_b64 exec, 1')
    a('buffer_store_dwordx2 v[10:11], v8, s[92:95], 0 offen sc1')
    a('s_mov_b64 exec, -1')
    a.label(lz)
    lskip = newlbl('s1nodep'); lj = newlbl('s1j')
    a('s_cmp_eq_u32 s64, 0')
    a('s_cbranch_scc1 %s' % lskip)
    a('s_lshl_b32 s62, s3, 1'); a('s_add_u32 s63, s62, 1')
    wait_dep(6, ['s62', 's63'], 7, prev_layer=True)
    a('s_branch %s' % lj)
    a.label(lskip)
    a('s_barrier')
    a.label(lj)
    stamp()
    A_regs_path(44, S1_ATR)
    stamp()
    de, do = gemm_setup_addr(NT, S1_W, 10, [MISC], [MISC + 1], D)
    ST = MISC + 4
    ln_stats(1, ST)
    stamp()
    gemm_loop(de, do, NT, 14)
    cs_read(range(6), WST)
    a('s_waitcnt lgkmcnt(0)')
    ln_apply(ACC, 24, WST, ST)
    stamp()
    WA = 16; QB = 24; KB = 28; PQ = 32; PK = 40; PHK = 56; VP = 64; TMP = 72
    a('v_lshl_add_u32 v8, v3, 2, v4')
    a('v_lshlrev_b32 v8, 6, v8')
    a('v_lshl_add_u32 v8, v5, 3, v8')
    a('v_add_u32 v8, 0x%x, v8' % S1_WPHI)
    for Fi in range(2):
        for h in range(2):
            a('ds_read_b64_tr_b16 v[%d:%d], v8 offset:%d' % (WA + 4 * Fi + 2 * h, WA + 4 * Fi + 2 * h + 1, h * 1024 + Fi * 32))
    for i in range(4):
        a('v_cvt_pk_bf16_f32 v%d, v%d, v%d' % (QB + i, ACC + 2 * i, ACC + 2 * i + 1))
        a('v_cvt_pk_bf16_f32 v%d, v%d, v%d' % (KB + i, ACC + 8 + 2 * i, ACC + 8 + 2 * i + 1))
    a('v_cndmask_b32 v%d, v%d, 1.0, s[60:61]' % (ACC + 20, ACC + 20))
    for i in range(1, 4):
        a('v_cndmask_b32 v%d, v%d, 0, s[60:61]' % (ACC + 20 + i, ACC + 20 + i))
    for i in range(4):
        a('v_cvt_pk_bf16_f32 v%d, v%d, v%d' % (VP + i, ACC + 16 + 2 * i, ACC + 16 + 2 * i + 1))
    for i in range(16): a('v_mov_b32 v%d, 0' % (PQ + i))
    a('s_waitcnt lgkmcnt(0)')
    for Fi in range(2):
        a('v_mfma_f32_16x16x32_bf16 %s, %s, %s, %s' % (vr(PK + 4 * Fi), vr(WA + 4 * Fi), vr(KB), vr(PK + 4 * Fi)))
        a('v_mfma_f32_16x16x32_bf16 %s, %s, %s, %s' % (vr(PQ + 4 * Fi), vr(WA + 4 * Fi), vr(QB), vr(PQ + 4 * Fi)))
    softmax_pair(PK, PHK, TMP)
    l1 = newlbl('zp'); l2 = newlbl('zq')
    a('s_cmp_lg_u32 s64, 0')
    a('s_cbranch_scc1 %s' % l1)
    wait_dep(7, ['s4'], 16)
    a('s_branch %s' % l2)
    a.label(l1)
    a('s_barrier')
    a.label(l2)
    a('s_lshl_b32 s10, s5, 4')
    a('v_add_u32 v9, s10, v2')
    a('v_lshlrev_b32 v10, 7, v9')
    a('v_lshl_add_u32 v10, v3, 4, v10')
    a('v_add_u32 v10, 0x%x, v10' % S1_PHIK)
    a('ds_write_b128 v10, %s' % vr(PHK))
    a('ds_write_b128 v10, %s offset:64' % vr(PHK + 4))
    a('v_lshlrev_b32 v10, 6, v9')
    a('v_lshl_add_u32 v10, v3, 4, v10')
    a('v_add_u32 v10, 0x%x, v10' % S1_VV)
    a('ds_write_b128 v10, %s' % vr(VP))
    a('s_waitcnt lgkmcnt(0)')
    a('s_barrier')
    a('v_lshl_add_u32 v8, v3, 3, v4')
    a('s_and_b32 s10, s5, 1')
    a('s_lshl_b32 s10, s10, 5')
    a('s_add_u32 s10, s10, 0x%x' % S1_VV)
    a('v_lshlrev_b32 v9, 6, v8')
    a('v_lshl_add_u32 v9, v5, 3, v9')
    a('v_add_u32 v9, s10, v9')
    a('s_lshr_b32 s10, s5, 1')
    a('s_lshl_b32 s10, s10, 5')
    a('s_add_u32 s10, s10, 0x%x' % S1_PHIK)
    a('v_lshlrev_b32 v10, 7, v8')
    a('v_lshl_add_u32 v10, v5, 3, v10')
    a('v_add_u32 v10, s10, v10')
    KA = 96; KBf = 112; KD = 128
    for t in range(4):
        for h in range(2):
            a('ds_read_b64_tr_b16 v[%d:%d], v9 offset:%d' % (KA + 4 * t + 2 * h, KA + 4 * t + 2 * h + 1, (32 * t + 4 * h) * 64))
            a('ds_read_b64_tr_b16 v[%d:%d], v10 offset:%d' % (KBf + 4 * t + 2 * h, KBf + 4 * t + 2 * h + 1, (32 * t + 4 * h) * 128))
    for i in range(4): a('v_mov_b32 v%d, 0' % (KD + i))
    a('s_waitcnt lgkmcnt(0)')
    for t in range(4):
        a('v_mfma_f32_16x16x32_bf16 %s, %s, %s, %s' % (vr(KD), vr(KA + 4 * t), vr(KBf + 4 * t), vr(KD)))
    a('s_lshl_b32 s10, s4, 13')
    a('s_and_b32 s11, s5, 1'); a('s_lshl_b32 s11, s11, 12'); a('s_add_u32 s10, s10, s11')
    a('s_lshr_b32 s11, s5, 1'); a('s_lshl_b32 s11, s11, 6'); a('s_add_u32 s10, s10, s11')
    a('v_lshlrev_b32 v8, 10, v3')
    a('v_lshl_add_u32 v8, v2, 2, v8')
    a('v_add_u32 v8, s10, v8')
    for i in range(4):
        a('buffer_atomic_add_f32 v%d, v8, s[52:55], 0 offen offset:%d' % (KD + i, 256 * i))
    softmax_pair(PQ, PHQ, TMP)
    get_tag()
    signal(0, ['s4'], 's3')
    stamp()

def stage_S2a():
    CUR['sc'] = '' if FAST else ' sc1'
    lsrd(40, 'KVP', SZ_KVP)
    lsrd(52, 'O', SZ_X)
    lsk = newlbl('nopf')
    a('s_cmp_eq_u32 s74, 0')
    a('s_cbranch_scc1 %s' % lsk)
    srd(44, 'wo', 0, D * D * 2)
    W_dma64(44, R0, D)
    a.label(lsk)
    wait_dep(0, ['s4'], 16)
    stamp()
    a('s_lshl_b32 s10, s4, 13')
    a('v_lshlrev_b32 v8, 4, v0')
    a('v_add_u32 v8, s10, v8')
    PT = 72
    a('buffer_load_dwordx4 %s, v8, s[40:43], 0 offen' % vr(PT))
    a('s_waitcnt vmcnt(0)')
    a('v_cvt_pk_bf16_f32 v%d, v%d, v%d' % (PT + 4, PT, PT + 1))
    a('v_cvt_pk_bf16_f32 v%d, v%d, v%d' % (PT + 5, PT + 2, PT + 3))
    a('v_lshlrev_b32 v9, 3, v0')
    a('v_add_u32 v9, %d, v9' % S2A_KV)
    a('ds_write_b64 v9, v[%d:%d]' % (PT + 4, PT + 5))
    a('s_waitcnt lgkmcnt(0)')
    a('s_barrier')
    a('v_lshlrev_b32 v9, 7, v2')
    a('v_lshl_add_u32 v9, v3, 4, v9')
    a('v_add_u32 v9, %d, v9' % S2A_KV)
    AF = 24; OD = 40
    for Tm in range(2):
        for u in range(2):
            a('ds_read_b128 %s, v9 offset:%d' % (vr(AF + 8 * Tm + 4 * u), Tm * 2048 + u * 64))
    for i in range(8): a('v_mov_b32 v%d, 0' % (OD + i))
    a('s_waitcnt lgkmcnt(0)')
    for u in range(2):
        for Tm in range(2):
            a('v_mfma_f32_16x16x32_bf16 %s, %s, %s, %s' % (vr(OD + 4 * Tm), vr(AF + 8 * Tm + 4 * u), vr(PHQ + 4 * u), vr(OD + 4 * Tm)))
    a('v_cndmask_b32 v48, 0, v%d, s[60:61]' % (OD + 4))
    allreduce_g(48, 49, 'v_add_f32')
    a('v_add_f32 v48, %s, v48' % f32hex(1e-6))
    a('v_rcp_f32 v48, v48')
    for i in range(8): a('v_mul_f32 v%d, v%d, v48' % (OD + i, OD + i))
    for i in range(4): a('v_cvt_pk_bf16_f32 v%d, v%d, v%d' % (50 + i, OD + 2 * i, OD + 2 * i + 1))
    a('s_mov_b32 s10, 896')
    a('v_mul_lo_u32 v12, v7, s10')
    a('s_mul_i32 s10, s4, 56')
    a('v_and_b32 v13, 1, v3'); a('v_lshlrev_b32 v13, 5, v13')
    a('v_lshrrev_b32 v14, 1, v3'); a('v_lshlrev_b32 v14, 3, v14')
    a('v_add3_u32 v12, v12, v13, v14')
    a('v_add_u32 v12, s10, v12')
    a('buffer_store_dwordx2 v[50:51], v12, s[52:55], 0 offen' + CUR['sc'])
    a('s_mov_b32 exec_hi, 0x0000ffff')
    a('buffer_store_dwordx2 v[52:53], v12, s[52:55], 0 offen offset:16' + CUR['sc'])
    a('s_mov_b32 exec_hi, -1')
    a('s_lshl_b32 s62, s3, 1'); a('s_add_u32 s63, s62, 1')
    signal(1, ['s62', 's63'], 's4')
    stamp()

def stage_small(kind, wreg, areg, target, prefetch):
    CUR['sc'] = '' if (FAST and kind != 'w1') else ' sc1'
    typeB_rows()
    if kind == 'wo':
        lsrd(44, 'O', SZ_X); srd(48, 'xsrc', 0, SZ_X); lsrd(52, 'XP', SZ_X)
    elif kind == 'w1':
        lsrd(44, 'XP', SZ_X); lsrd(52, 'HH', SZ_X); lsrd(56, 'STATS', SZ_STATS)
    else:
        lsrd(44, 'HH', SZ_X); lsrd(48, 'XP', SZ_X); lsrd(52, 'X1', SZ_X); lsrd(56, 'STATS', SZ_STATS)
    st = {'wo': 1, 'w1': 2, 'w2': 3}[kind]
    A_dma_addr(shifted=(kind == 'w2'))
    if kind == 'w1':
        a('s_waitcnt vmcnt(0)')
        a('s_barrier')
        colsum_prepass(4, wreg, True)
    if kind == 'w2':
        a('s_sub_u32 s62, s6, 1'); a('s_max_i32 s62, s62, 0')
        a('s_add_u32 s63, s6, 1'); a('s_min_u32 s63, s63, 31')
        wait_dep(st, ['s6', 's62', 's63'], 7)
    else:
        wait_dep(st, ['s6'], 16 if kind == 'wo' else 7)
    stamp()
    A_dma_issue(44, areg)
    out_addrB(13)
    RES = 112
    if kind in ('wo', 'w2'):
        a('buffer_load_dwordx2 v[%d:%d], v13, s[48:51], 0 offen' % (RES, RES + 1))
        a('buffer_load_dwordx2 v[%d:%d], v13, s[48:51], 0 offen offset:32' % (RES + 2, RES + 3))
    if kind == 'w2':
        a('v_lshlrev_b32 v14, 3, v7')
        a('buffer_load_dwordx2 v[%d:%d], v14, s[56:59], 0 offen' % (RES + 4, RES + 5))
    tr_bases64(wreg, 120)
    a('s_waitcnt vmcnt(0)')
    a('s_barrier')
    stamp()
    A_frag_read(areg)
    a('s_waitcnt lgkmcnt(0)')
    a('s_barrier')
    prefetch()
    if kind == 'w1':
        ln_stats(2, MISC + 12)
        l = newlbl('nostat')
        a('s_or_b32 s10, s7, s13')
        a('s_cmp_lg_u32 s10, 0')
        a('s_cbranch_scc1 %s' % l)
        a('v_lshlrev_b32 v14, 3, v7')
        a('s_mov_b64 exec, 0xffff')
        a('buffer_store_dwordx2 v[%d:%d], v14, s[56:59], 0 offen sc1' % (MISC + 12, MISC + 13))
        a('s_mov_b64 exec, -1')
        a.label(l)
    stamp()
    gemm64(120)
    if kind == 'w1':
        cs_read([0, 1], 100, 's13')
        a('s_waitcnt lgkmcnt(0)')
        ln_apply(ACC, 8, 100, MISC + 12)
    stamp()
    T0 = MISC
    if kind == 'wo':
        unpack4(RES, T0); unpack4(RES + 2, T0 + 4)
        for i in range(8): a('v_add_f32 v%d, v%d, v%d' % (ACC + i, ACC + i, T0 + i))
    elif kind == 'w1':
        for i in range(8): gelu(ACC + i, T0 + 2 * (i & 3))
    else:
        unpack4(RES, T0); unpack4(RES + 2, T0 + 4)
        for i in range(8):
            a('v_sub_f32 v%d, v%d, v%d' % (T0 + i, T0 + i, RES + 4))
            a('v_fmac_f32 v%d, v%d, v%d' % (ACC + i, T0 + i, RES + 5))
    for i in range(4):
        a('v_cvt_pk_bf16_f32 v%d, v%d, v%d' % (T0 + 8 + i, ACC + 2 * i, ACC + 2 * i + 1))
    st16_addr(14, 13)
    swap16(T0 + 8)
    a(('buffer_store_dwordx4 %s, v14, s[52:55], 0 offen' + CUR['sc']) % vr(T0 + 8))
    signal(st + 1, ['s6'], 's7')
    stamp()

S5_W = R1
def stage_S5():
    CUR['sc'] = '' if FAST else ' sc1'
    NT = 7
    typeA_rows()
    srd(40, 'w3', 0, D * F * 2)
    lsrd(44, 'X1', SZ_X)
    lsrd(52, 'G', SZ_G)
    lpf = newlbl('s5pf')
    a('s_cmp_lg_u32 s74, 0')
    a('s_cbranch_scc1 %s' % lpf)
    W_dma_generic(40, F * 2, D, NT, [(0, 224, 14)], S5_W)
    a.label(lpf)
    a('s_waitcnt vmcnt(0)')
    a('s_barrier')
    stamp()
    colsum_prepass(NT, S5_W, False)
    a('s_lshl_b32 s62, s3, 1'); a('s_add_u32 s63, s62, 1')
    wait_dep(4, ['s62', 's63'], 7)
    stamp()
    A_regs_path(44, R0)
    stamp()
    ST = MISC + 12
    ln_stats(1, ST)
    de, do = gemm_setup_addr(NT, S5_W, 10, [MISC], [MISC + 1], D, plain=[MISC + 2, MISC + 3])
    a('s_mov_b32 s10, %d' % (F * 2))
    a('v_mul_lo_u32 v13, v7, s10')
    a('s_mul_i32 s10, s4, 224')
    a('v_lshlrev_b32 v14, 3, v3')
    a('v_add3_u32 v13, v13, v14, s10')
    stamp()
    gemm_loop(de, do, NT, 14)
    cs_read(range(7), WST)
    a('s_waitcnt lgkmcnt(0)')
    ln_apply(ACC, 28, WST, ST)
    stamp()
    T0 = MISC
    st16_addr(14, 13)
    PK = 16
    for T in range(NT):
        for i in range(4): gelu(ACC + 4 * T + i, T0 + 2 * i)
        a('v_cvt_pk_bf16_f32 v%d, v%d, v%d' % (PK + 2 * T, ACC + 4 * T, ACC + 4 * T + 1))
        a('v_cvt_pk_bf16_f32 v%d, v%d, v%d' % (PK + 2 * T + 1, ACC + 4 * T + 2, ACC + 4 * T + 3))
        if T & 1:
            swap16(PK + 2 * T - 2)
            a(('buffer_store_dwordx4 %s, v14, s[52:55], 0 offen offset:%d' + CUR['sc']) % (vr(PK + 2 * T - 2), 32 * (T - 1)))
    a(('buffer_store_dwordx2 v[%d:%d], v13, s[52:55], 0 offen offset:%d' + CUR['sc']) % (PK + 12, PK + 13, 32 * 6))
    a('s_lshl_b32 s62, s3, 1'); a('s_add_u32 s63, s62, 1')
    signal(5, ['s62', 's63'], 's4')
    stamp()

def stage_S6():
    NC = 14
    CUR['sc'] = '' if FAST else ' sc1'
    typeB_rows()
    srd(40, 'w4', 0, D * F * 2)
    lsrd(44, 'G', SZ_G)
    lsrd(48, 'XP', SZ_X)
    lsrd(56, 'X1', SZ_X)
    srd(52, 'xdst', 0, SZ_X)
    a('v_lshrrev_b32 v16, 3, v1')
    a('s_lshl_b32 s10, s5, 3')
    a('v_add_u32 v16, s10, v16')
    a('v_mul_u32_u24 v16, 896, v16')
    a('v_bfe_u32 v9, v1, 4, 1')
    a('s_and_b32 s10, s5, 1')
    a('s_lshl_b32 s10, s10, 1')
    a('v_or_b32 v9, s10, v9')
    a('v_bfe_u32 v10, v1, 1, 2')
    a('v_xor_b32 v9, v9, v10')
    a('v_lshlrev_b32 v9, 5, v9')
    a('v_and_b32 v10, 1, v1')
    a('v_lshlrev_b32 v10, 4, v10')
    a('v_add3_u32 v16, v16, v9, v10')
    a('s_lshl_b32 s10, s7, 7')
    a('v_add_u32 v16, s10, v16')
    a('s_lshl_b32 s10, s5, 2')
    a('v_add_u32 v17, s10, v3')
    a('v_and_b32 v10, 15, v17')
    a('v_xor_b32 v9, v2, v10')
    a('v_lshlrev_b32 v9, 4, v9')
    a('s_lshl_b32 s10, s6, 6')
    a('v_add_u32 v17, s10, v17')
    a('s_mov_b32 s10, %d' % (F * 2))
    a('v_mul_lo_u32 v17, v17, s10')
    a('v_add_u32 v17, v17, v9')
    a('s_lshl_b32 s12, s5, 10')
    def dmaW(kc):
        b = (kc & 3) * 16384 + 65536
        for i in range(2):
            a('s_add_u32 m0, s12, %d' % (b + i * 8192))
            a('s_mov_b32 s10, %d' % ((kc * 128 + i * 64) * 896))
            a('buffer_load_dwordx4 v16, s[40:43], s10 offen lds')
    def dmaA(kc):
        b = (kc & 3) * 16384
        for i in range(2):
            a('s_add_u32 m0, s12, %d' % (b + i * 8192))
            a('s_mov_b32 s10, %d' % (kc * 256 + i * 32 * F * 2))
            a('buffer_load_dwordx4 v17, s[44:47], s10 offen lds')
    dmaW(0); dmaW(1); dmaW(2)
    wait_dep(5, ['s6'], 16)
    stamp()
    dmaA(0); dmaA(1); dmaA(2)
    out_addrB(13)
    tr_bases64(65536, 18)
    a('s_lshr_b32 s10, s5, 1')
    a('s_lshl_b32 s10, s10, 12')
    a('v_lshlrev_b32 v24, 8, v2')
    a('v_add_u32 v24, s10, v24')
    a('v_xor_b32 v25, v3, v2')
    for t in range(4):
        a('v_xor_b32 v%d, %d, v25' % (26 + t, 4 * t))
        a('v_lshl_add_u32 v%d, v%d, 4, v24' % (26 + t, 26 + t))
    RES = 40
    for i in range(8): a('v_mov_b32 v%d, 0' % (ACC + i))
    BF = 160
    def reads(kc, t, slot):
        bo = (kc & 3) * 16384
        a('ds_read_b128 %s, v%d offset:%d' % (vr(BF + 4 * slot), 26 + t, bo))
        for T in range(2):
            for h in range(2):
                a('ds_read_b64_tr_b16 v[%d:%d], v%d offset:%d' % (FRG + 8 * slot + 4 * T + 2 * h, FRG + 8 * slot + 4 * T + 2 * h + 1, 18 + T, bo + (32 * t + 4 * h) * 128))
    for kc in range(NC):
        if kc == 0: n = 4
        elif kc == 1: n = 2 + 4
        elif kc + 2 < NC: n = 8
        elif kc + 1 < NC: n = 4 + 4
        else: n = 4
        a('s_waitcnt vmcnt(%d)' % n)
        a('s_barrier')
        reads(kc, 0, 0); reads(kc, 1, 1); reads(kc, 2, 2)
        if kc + 3 < NC:
            dmaW(kc + 3); dmaA(kc + 3)
        if kc == NC - 3:
            a('buffer_load_dwordx2 v[%d:%d], v13, s[48:51], 0 offen' % (RES, RES + 1))
            a('buffer_load_dwordx2 v[%d:%d], v13, s[48:51], 0 offen offset:32' % (RES + 2, RES + 3))
            a('buffer_load_dwordx2 v[%d:%d], v13, s[56:59], 0 offen' % (RES + 4, RES + 5))
            a('buffer_load_dwordx2 v[%d:%d], v13, s[56:59], 0 offen offset:32' % (RES + 6, RES + 7))
        for t in range(4):
            if t == 0:
                a('s_waitcnt lgkmcnt(10)')
            elif t == 1:
                reads(kc, 3, 0); a('s_waitcnt lgkmcnt(10)')
            elif t == 2: a('s_waitcnt lgkmcnt(5)')
            else: a('s_waitcnt lgkmcnt(0)')
            sl = t % 3
            for T in range(2):
                a('v_mfma_f32_16x16x32_bf16 %s, %s, %s, %s' % (vr(ACC + 4 * T), vr(FRG + 8 * sl + 4 * T), vr(BF + 4 * sl), vr(ACC + 4 * T)))
    stamp()
    T0 = MISC
    a('s_waitcnt vmcnt(0)')
    unpack4(RES, T0); unpack4(RES + 2, T0 + 4)
    for i in range(8): a('v_add_f32 v%d, v%d, v%d' % (ACC + i, ACC + i, T0 + i))
    unpack4(RES + 4, T0); unpack4(RES + 6, T0 + 4)
    for i in range(8): a('v_add_f32 v%d, v%d, v%d' % (ACC + i, ACC + i, T0 + i))
    for i in range(4):
        a('v_cvt_pk_bf16_f32 v%d, v%d, v%d' % (T0 + 8 + i, ACC + 2 * i, ACC + 2 * i + 1))
    st16_addr(14, 13)
    swap16(T0 + 8)
    a(('buffer_store_dwordx4 %s, v14, s[52:55], 0 offen' + CUR['sc']) % vr(T0 + 8))
    signal(6, ['s6'], 's7')
    stamp()

def build():
    a.raw('.p2align 8')
    a.raw('.globl %s' % KNAME)
    a.raw('.type %s,@function' % KNAME)
    a.raw('%s:' % KNAME)
    a('s_cmp_ge_u32 s2, 256')
    a('s_cbranch_scc1 L_end')
    a('s_load_dwordx16 s[16:31], s[0:1], 0x0')
    a('s_load_dwordx8 s[32:39], s[0:1], 0x40')
    a('''s_and_b32 s10, s2, 7
         s_lshr_b32 s11, s2, 3
         s_and_b32 s12, s11, 1
         s_lshl_b32 s12, s12, 3
         s_add_u32 s3, s10, s12
         s_lshr_b32 s4, s11, 1
         s_mul_i32 s12, s11, 37
         s_lshr_b32 s12, s12, 8
         s_mul_i32 s13, s12, 7
         s_sub_u32 s7, s11, s13
         s_lshr_b32 s13, s12, 1
         s_lshl_b32 s13, s13, 3
         s_add_u32 s13, s13, s10
         s_lshl_b32 s13, s13, 1
         s_and_b32 s6, s12, 1
         s_add_u32 s6, s6, s13
         s_cmp_lt_u32 s11, 28
         s_cselect_b32 s74, 1, 0
         v_and_b32 v1, 63, v0
         v_and_b32 v2, 15, v1
         v_lshrrev_b32 v3, 4, v1
         v_bfe_u32 v4, v1, 2, 2
         v_and_b32 v5, 3, v1
         v_lshrrev_b32 v6, 6, v0
         v_readfirstlane_b32 s5, v6
         s_mov_b32 s60, 0
         s_mov_b32 s61, 0xffff0000''')
    assert all((m * 37) >> 8 == m // 7 for m in range(32))
    m56, sh56 = magic_div(56, 448)
    for i in range(7):
        r = OFFS + i
        a('v_add_u32 v8, %d, v1' % (64 * i))
        a('v_mul_u32_u24 v9, %d, v8' % m56)
        a('v_lshrrev_b32 v9, %d, v9' % sh56)
        a('v_mul_u32_u24 v10, 56, v9')
        a('v_sub_u32 v8, v8, v10')
        a('v_lshrrev_b32 v10, 1, v9')
        a('v_xor_b32 v8, v8, v10')
        a('v_lshlrev_b32 v8, 4, v8')
        a('v_mul_u32_u24 v9, 896, v9')
        a('v_add_u32 v%d, v8, v9' % r)
    a('v_lshrrev_b32 v8, 1, v2')
    a('v_xor_b32 v8, v8, v3')
    a('v_mul_u32_u24 v9, 896, v2')
    a('v_lshl_add_u32 v%d, v8, 4, v9' % FAE)
    a('v_xor_b32 v8, 4, v8')
    a('v_lshl_add_u32 v%d, v8, 4, v9' % FAO)
    for i in range(4): a('v_mov_b32 v%d, 0x3f803f80' % (ONES + i))
    a('s_waitcnt lgkmcnt(0)')
    srd(76, 'dbg', 0, 256)
    srd(92, 'ws', FLAG_OFF, 16 * 4096)
    a('s_mov_b32 s90, 0'); a('s_mov_b32 s91, 0')
    a('s_or_b32 s10, s2, s5')
    a('s_cmp_lg_u32 s10, 0')
    a('s_cbranch_scc1 L_notag')
    a('s_memrealtime s[10:11]')
    a('s_waitcnt lgkmcnt(0)')
    a('s_or_b32 s10, s10, 1')
    a('v_mov_b32 v10, s10'); a('v_mov_b32 v11, s11'); a('v_mov_b32 v8, 0')
    a('s_mov_b64 exec, 1')
    a('buffer_store_dwordx2 v[10:11], v8, s[76:79], 0 offen sc1')
    a('s_mov_b64 exec, -1')
    a.label('L_notag')
    if STAMPS: srd(84, 'ws', 60 * MB, 4 * MB)
    a('s_mov_b32 s64, 0')
    a.flush_hazards(4)
    a.label('L_layer')
    a('s_lshl_b32 s10, s64, 25')
    a('s_add_u32 s66, s38, s10'); a('s_addc_u32 s67, s39, 0')
    a('s_add_u32 s10, s38, 0x%x' % WOFF['X2']); a('s_addc_u32 s11, s39, 0')
    a('s_cmp_eq_u32 s64, 0')
    a('s_cselect_b32 s68, s16, s10'); a('s_cselect_b32 s69, s17, s11')
    a('s_cselect_b32 s70, s10, s34'); a('s_cselect_b32 s71, s11, s35')
    a('s_mul_i32 s72, s64, %d' % CNT_PER_LAYER)
    nstamp[0] = 0
    stamp()
    stage_S1()
    stage_S2a()
    lB = newlbl('skipB')
    a('s_cmp_eq_u32 s74, 0')
    a('s_cbranch_scc1 %s' % lB)
    def pf_w1():
        srd(40, 'w1', 0, D * D * 2); W_dma64(40, R1, D)
    def pf_w2():
        srd(40, 'w2', 0, D * D * 2); W_dma64(40, R0, D)
    stage_small('wo', R0, R1, 16, pf_w1)
    stage_small('w1', R1, R0, 23, pf_w2)
    def pf_w3():
        srd(40, 'w3', 0, D * F * 2); W_dma_generic(40, F * 2, D, 7, [(0, 224, 14)], S5_W)
    stage_small('w2', R0, R1, 30, pf_w3)
    a.label(lB)
    stage_S5()
    lB2 = newlbl('skipB')
    a('s_cmp_eq_u32 s74, 0')
    a('s_cbranch_scc1 %s' % lB2)
    stage_S6()
    a.label(lB2)
    a('s_add_u32 s64, s64, 1')
    a('s_cmp_lt_u32 s64, 2')
    a.flush_hazards(13)
    a('s_cbranch_scc1 L_layer')
    a.label('L_abort')
    a.label('L_end')
    a('s_endpgm')
    hdr = '; @launch grid=(256,1,1) block=(512,1,1) lds=%d\n' % LDS_TOTAL
    txt = hdr + '.amdgcn_target "amdgcn-amd-amdhsa--gfx950"\n.text\n' + a.text()
    txt += '''.section .rodata,"a"
.p2align 6
.amdhsa_kernel %s
  .amdhsa_next_free_vgpr 256
  .amdhsa_next_free_sgpr 100
  .amdhsa_accum_offset 256
  .amdhsa_group_segment_fixed_size 0
  .amdhsa_kernarg_size 96
  .amdhsa_user_sgpr_count 2
  .amdhsa_user_sgpr_kernarg_segment_ptr 1
  .amdhsa_system_sgpr_workgroup_id_x 1
.end_amdhsa_kernel
''' % KNAME
    return txt

if __name__ == '__main__':
    out = sys.argv[1] if len(sys.argv) > 1 else 'pers.s'
    open(out, 'w').write(build())
    print('written', out, 'nops', a.nops_inserted)
```

```python
import sys, os, struct
sys.path.insert(0, 'gen')
from asmlib import Asm

S, D, H, DH, F = 2048, 448, 16, 28, 1792
MB = 1 << 20
WOFF = dict(KVP=0, PHIQ=2 * MB, O=6 * MB, XP=8 * MB, HH=10 * MB, X1=12 * MB, STATS=14 * MB, G=16 * MB, X2=24 * MB)
SZ_X = S * D * 2
SZ_G = S * F * 2
SZ_KVP = 16 * 16 * 8192
SZ_STATS = S * 8
P = dict(x=16, wqkv=18, wphi=20, wo=22, bx=24, w1=26, w2=28, w3=30, w4=32, out=34, dbg=36, ws=38, lws=66, xsrc=68, xdst=70)
LOG2E = 1.4426950408889634
STAMPS = int(os.environ.get('STAMPS', '0'))
FAST = int(os.environ.get('FAST', '0'))
CUR = {'sc': ' sc1'}
KNAME = 'interleave_layers__linear_kernel_hedgehog__mixer_s_mlp__prompt_kernel'

def f32hex(x):
    return '0x%08x' % struct.unpack('<I', struct.pack('<f', x))[0]
def vr(b, n=4):
    return 'v[%d:%d]' % (b, b + n - 1)

ACT = 16
WST = 72
FRG = 128
ACC = 184
MISC = 212
OFFS = 236
FAE = 243; FAO = 244
TMPA = 245
PHQ = 248
R0 = 0; R1 = 57344; R2 = 114688
LDS_TOTAL = 163840
S1_W = 65536; S1_WPHI = 151552; S1_ATR = 0
S1_PHIK = S1_ATR; S1_VV = S1_ATR + 16384
S2A_KV = 155648
CNT_PER_LAYER = 60

a = Asm()
nstamp = [0]
def stamp():
    if not STAMPS: return
    i = nstamp[0]
    a('s_waitcnt lgkmcnt(0)')
    a('s_memtime s[80:81]')
    a('s_waitcnt lgkmcnt(0)')
    a('v_mov_b32 v%d, s80' % TMPA)
    a('s_lshl_b32 s82, s2, 10')
    a('s_lshl_b32 s83, s64, 8')
    a('s_add_u32 s82, s82, s83')
    a('s_lshl_b32 s83, s5, 9')
    a('s_add_u32 s82, s82, s83')
    a('v_mov_b32 v%d, s82' % (TMPA + 1))
    a('s_cmp_gt_u32 s5, 1')
    a('s_cbranch_scc1 L_nost_%d' % i)
    a('s_mov_b64 exec, 1')
    a('buffer_store_dword v%d, v%d, s[84:87], 0 offen offset:%d' % (TMPA, TMPA + 1, 4 * (i % 64)))
    a('s_mov_b64 exec, -1')
    a.label('L_nost_%d' % i)
    nstamp[0] += 1

def srd(d, ptr, off, size):
    p = P[ptr]
    if off:
        a('s_add_u32 s%d, s%d, 0x%x' % (d, p, off))
        a('s_addc_u32 s%d, s%d, 0' % (d + 1, p + 1))
    else:
        a('s_mov_b32 s%d, s%d' % (d, p))
        a('s_mov_b32 s%d, s%d' % (d + 1, p + 1))
    a('s_mov_b32 s%d, 0x%x' % (d + 2, size))
    a('s_mov_b32 s%d, 0x00020000' % (d + 3))
def lsrd(d, name, size):
    srd(d, 'lws', WOFF[name], size)

def magic_div(d, maxv):
    for sh in range(8, 24):
        m = -(-(1 << sh) // d)
        if all((t * m) >> sh == t // d for t in range(maxv)) and m * maxv < (1 << 32) and m < (1 << 24):
            return m, sh
    raise ValueError

class DsBase:
    def __init__(self, reg, extra_regs):
        self.reg = reg; self.extra = list(extra_regs); self.made = {}
    def prep(self, maxoff):
        k = 1
        while maxoff >= k * 61440:
            r = self.extra[k - 1]
            a('v_add_u32 v%d, 0x%x, v%d' % (r, k * 61440, self.reg))
            self.made[k] = r
            k += 1
    def at(self, off):
        k = off // 61440
        r = self.reg if k == 0 else self.made[k]
        return 'v%d' % r, off - k * 61440

lblc = [0]
def newlbl(p):
    lblc[0] += 1
    return 'L_%s_%d' % (p, lblc[0])

FLAG_OFF = 56 * MB
def get_tag():
    l = newlbl('gt'); lp = newlbl('gtp')
    a('s_cmp_lg_u32 s5, 0')
    a('s_cbranch_scc1 %s' % l)
    a('s_cmp_lg_u32 s90, 0')
    a('s_cbranch_scc1 %s' % l)
    a('v_mov_b32 v8, 0')
    a('s_mov_b32 s15, 0')
    a.flush_hazards(4)
    a.label(lp)
    a('buffer_load_dwordx2 v[10:11], v8, s[76:79], 0 offen sc1')
    a('s_waitcnt vmcnt(0)')
    a('v_readfirstlane_b32 s90, v10')
    a('v_readfirstlane_b32 s91, v11')
    a('s_add_u32 s15, s15, 1')
    a('s_cmp_gt_u32 s15, 0x40000')
    a('s_cbranch_scc1 L_abort')
    a('s_cmp_lg_u32 s90, 0')
    a('s_cbranch_scc1 %s' % l)
    a('s_sleep 2')
    a('s_branch %s' % lp)
    a.label(l)

def flag_addr(stage, groups, slot_expr):
    pass

def signal(stage, groups, slot):
    a('s_waitcnt vmcnt(0) lgkmcnt(0)')
    a('s_barrier')
    l = newlbl('sig')
    a('s_cmp_lg_u32 s5, 0')
    a('s_cbranch_scc1 %s' % l)
    a('v_mov_b32 v8, %s' % groups[0])
    if len(groups) > 1:
        a('v_mov_b32 v9, %s' % groups[1])
        a('v_cmp_eq_u32 vcc, 1, v1')
        a('v_cndmask_b32 v8, v8, v9, vcc')
    a('s_lshl_b32 s10, s64, 3')
    a('s_add_u32 s10, s10, %d' % stage)
    a('s_lshl_b32 s10, s10, 12')
    a('s_lshl_b32 s11, %s, 3' % slot)
    a('s_add_u32 s10, s10, s11')
    a('v_lshlrev_b32 v8, 7, v8')
    a('v_add_u32 v8, s10, v8')
    a('v_mov_b32 v10, s90')
    a('v_mov_b32 v11, s91')
    a('s_mov_b64 exec, %d' % ((1 << len(groups)) - 1))
    a('buffer_store_dwordx2 v[10:11], v8, s[92:95], 0 offen' + CUR['sc'])
    a('s_mov_b64 exec, -1')
    a.label(l)

def wait_dep(stage, groups, nslots, prev_layer=False):
    l = newlbl('wd'); lp = newlbl('poll')
    a('s_cmp_lg_u32 s5, 0')
    a('s_cbranch_scc1 %s' % l)
    a('v_mov_b32 v8, %s' % groups[0])
    for i in range(1, len(groups)):
        a('v_mov_b32 v9, %s' % groups[i])
        a('v_cmp_eq_u32 vcc, %d, v3' % i)
        a('v_cndmask_b32 v8, v8, v9, vcc')
    a('s_lshl_b32 s10, s64, 3')
    a('s_add_u32 s10, s10, %d' % (stage - (8 if prev_layer else 0)))
    a('s_lshl_b32 s10, s10, 12')
    a('v_lshlrev_b32 v8, 7, v8')
    a('v_lshl_add_u32 v8, v2, 3, v8')
    a('v_add_u32 v8, s10, v8')
    msk = 0
    for i in range(len(groups)): msk |= ((1 << nslots) - 1) << (16 * i)
    a('s_mov_b32 exec_lo, 0x%x' % (msk & 0xffffffff))
    a('s_mov_b32 exec_hi, 0x%x' % (msk >> 32))
    a('s_mov_b32 s15, 0')
    a.flush_hazards(6)
    a.label(lp)
    a('buffer_load_dwordx2 v[10:11], v8, s[92:95], 0 offen sc1')
    a('s_waitcnt vmcnt(0)')
    a('v_cmp_ne_u64 vcc, s[90:91], v[10:11]')
    a('s_add_u32 s15, s15, 1')
    a('s_cmp_gt_u32 s15, 0x40000')
    a('s_cbranch_scc1 L_abort')
    a('s_cmp_eq_u64 vcc, 0')
    a.flush_hazards(3)
    a('s_cbranch_scc1 %s_done' % lp)
    a('s_sleep 1')
    a('s_branch %s' % lp)
    a.label('%s_done' % lp)
    a('s_mov_b64 exec, -1')
    a.label(l)
    a('s_barrier')

def w_stage_issue(srdn, wstride, K, NT, R, segs, tmp, dst=WST):
    CH = 2 * NT
    used = R * CH
    rounds = K // R
    m, sh = magic_div(CH, 512)
    t0, t1 = tmp, tmp + 1
    a('v_min_u32 v%d, %d, v0' % (t0, used - 1))
    a('v_mul_u32_u24 v%d, %d, v%d' % (t1, m, t0))
    a('v_lshrrev_b32 v%d, %d, v%d' % (t1, sh, t1))
    a('v_mul_u32_u24 v%d, %d, v%d' % (tmp + 2, CH, t1))
    a('v_sub_u32 v%d, v%d, v%d' % (t0, t0, tmp + 2))
    a('s_mov_b32 s10, %d' % wstride)
    a('v_mul_lo_u32 v%d, v%d, s10' % (tmp + 2, t1))
    if len(segs) == 1:
        imm, jmul, _ = segs[0]
        a('s_mul_i32 s10, s4, %d' % jmul)
        a('v_lshlrev_b32 v%d, 4, v%d' % (tmp + 3, t0))
        a('v_add3_u32 v%d, v%d, v%d, s10' % (tmp + 2, tmp + 2, tmp + 3))
    else:
        segstride = segs[1][0] - segs[0][0]
        jmul = segs[0][1]
        a('s_mul_i32 s10, s4, %d' % jmul)
        a('v_lshrrev_b32 v%d, 2, v%d' % (tmp + 3, t0))
        a('v_mul_u32_u24 v%d, %d, v%d' % (tmp + 3, segstride, tmp + 3))
        a('v_add3_u32 v%d, v%d, v%d, s10' % (tmp + 2, tmp + 2, tmp + 3))
        a('v_and_b32 v%d, 3, v%d' % (tmp + 3, t0))
        a('v_lshlrev_b32 v%d, 4, v%d' % (tmp + 3, tmp + 3))
        a('v_add_u32 v%d, v%d, v%d' % (tmp + 2, tmp + 2, tmp + 3))
    for i in range(rounds):
        a('s_mov_b32 s10, 0x%x' % (i * R * wstride))
        a('buffer_load_dwordx4 %s, v%d, s[%d:%d], s10 offen' % (vr(dst + 4 * i), tmp + 2, srdn, srdn + 3))
    RS = 32 * NT
    a('v_bfe_u32 v%d, v%d, 3, 1' % (tmp + 2, t1))
    a('v_lshrrev_b32 v%d, 1, v%d' % (tmp + 3, t0))
    if NT % 2:
        a('v_cmp_gt_u32 vcc, %d, v%d' % (NT - 1, tmp + 3))
        a('v_cndmask_b32 v%d, 0, v%d, vcc' % (tmp + 2, tmp + 2))
    a('v_xor_b32 v%d, v%d, v%d' % (tmp + 2, tmp + 2, tmp + 3))
    a('v_lshlrev_b32 v%d, 5, v%d' % (tmp + 2, tmp + 2))
    a('v_and_b32 v%d, 1, v%d' % (tmp + 3, t0))
    a('v_lshlrev_b32 v%d, 4, v%d' % (tmp + 3, tmp + 3))
    a('v_mul_u32_u24 v%d, %d, v%d' % (t1, RS, t1))
    a('v_add3_u32 v%d, v%d, v%d, v%d' % (t1, t1, tmp + 2, tmp + 3))
    return rounds

def w_stage_write(rounds, NT, R, ldsbase, addr_reg, extra, pending_after, src=WST):
    RS = 32 * NT
    if ldsbase:
        a('v_add_u32 v%d, 0x%x, v%d' % (addr_reg, ldsbase, addr_reg))
    db = DsBase(addr_reg, extra)
    db.prep((rounds - 1) * R * RS)
    for i in range(rounds):
        a('s_waitcnt vmcnt(%d)' % min(63, rounds - 1 - i + pending_after))
        r, o = db.at(i * R * RS)
        a('ds_write_b128 %s, %s offset:%d' % (r, vr(src + 4 * i), o))

def W_dma_generic(srdn, wstride, K, NT, segs, ldsbase, only=None):
    CH = 2 * NT
    NCH = K * CH
    ninstr = -(-NCH // 64)
    m, sh = magic_div(CH, ninstr * 64 + 512)
    if len(segs) == 1: a('s_mul_i32 s11, s4, %d' % segs[0][1])
    else: a('s_mul_i32 s11, s4, %d' % segs[0][1])
    a('s_lshl_b32 s12, s5, 10')
    a('s_add_u32 s12, s12, %d' % ldsbase)
    a('s_lshl_b32 s10, s5, 6')
    a('v_add_u32 v12, s10, v1')
    for i in range(-(-ninstr // 8)):
        if only is not None and i not in only: continue
        lsk = None
        if i * 8 + 7 >= ninstr:
            lsk = newlbl('wdg')
            a('s_cmp_ge_u32 s5, %d' % (ninstr - i * 8))
            a('s_cbranch_scc1 %s' % lsk)
        a('v_add_u32 v8, %d, v12' % (i * 512))
        a('v_mul_u32_u24 v9, %d, v8' % m)
        a('v_lshrrev_b32 v9, %d, v9' % sh)
        a('v_mul_u32_u24 v10, %d, v9' % CH)
        a('v_sub_u32 v8, v8, v10')
        a('v_bfe_u32 v10, v9, 3, 1')
        a('v_lshrrev_b32 v11, 1, v8')
        if NT % 2:
            a('v_cmp_gt_u32 vcc, %d, v11' % (NT - 1))
            a('v_cndmask_b32 v10, 0, v10, vcc')
        a('v_lshlrev_b32 v10, 1, v10')
        a('v_xor_b32 v8, v8, v10')
        a('s_mov_b32 s10, %d' % wstride)
        a('v_mul_lo_u32 v9, v9, s10')
        if len(segs) == 1:
            a('v_lshl_add_u32 v9, v8, 4, v9')
        else:
            segstride = segs[1][0] - segs[0][0]
            a('v_lshrrev_b32 v10, 2, v8')
            a('v_mul_u32_u24 v10, %d, v10' % segstride)
            a('v_and_b32 v8, 3, v8')
            a('v_lshlrev_b32 v8, 4, v8')
            a('v_add3_u32 v9, v9, v10, v8')
        a('s_add_u32 m0, s12, %d' % (i * 8192))
        a('buffer_load_dwordx4 v9, s[%d:%d], s11 offen lds' % (srdn, srdn + 3))
        if lsk: a.label(lsk)

def allreduce_g(x, t, op):
    a('v_mov_b32 v%d, v%d' % (t, x))
    a('v_permlane16_swap_b32 v%d, v%d' % (x, t))
    a('%s v%d, v%d, v%d' % (op, x, x, t))
    a('v_mov_b32 v%d, v%d' % (t, x))
    a('v_permlane32_swap_b32 v%d, v%d' % (x, t))
    a('%s v%d, v%d, v%d' % (op, x, x, t))

def layernorm(mode, tmp):
    s0, s1, q0, q1, one = tmp, tmp + 1, tmp + 2, tmp + 3, tmp + 4
    a('v_mov_b32 v%d, 0x3f803f80' % one)
    for r in (s0, s1, q0, q1): a('v_mov_b32 v%d, 0' % r)
    for i in range(56):
        x = ACT + i
        a('v_dot2_f32_bf16 v%d, v%d, v%d, v%d' % ((s0, s1)[i & 1], x, one, (s0, s1)[i & 1]))
        a('v_dot2_f32_bf16 v%d, v%d, v%d, v%d' % ((q0, q1)[i & 1], x, x, (q0, q1)[i & 1]))
    a('v_add_f32 v%d, v%d, v%d' % (s0, s0, s1))
    a('v_add_f32 v%d, v%d, v%d' % (q0, q0, q1))
    allreduce_g(s0, tmp + 5, 'v_add_f32')
    allreduce_g(q0, tmp + 5, 'v_add_f32')
    a('v_mul_f32 v%d, %s, v%d' % (s0, f32hex(1.0 / D), s0))
    a('v_mul_f32 v%d, %s, v%d' % (q0, f32hex(1.0 / D), q0))
    a('v_fma_f32 v%d, -v%d, v%d, v%d' % (q0, s0, s0, q0))
    a('v_max_f32 v%d, 0, v%d' % (q0, q0))
    a('v_add_f32 v%d, %s, v%d' % (s1, f32hex(1e-5), q0))
    a('v_rsq_f32 v%d, v%d' % (s1, s1))
    sc = s1
    if mode == 2:
        a('v_mul_f32 v%d, v%d, v%d' % (q1, s1, s1))
        a('v_mul_f32 v%d, v%d, v%d' % (q1, q1, q0))
        a('v_add_f32 v%d, %s, v%d' % (q1, f32hex(1e-5), q1))
        a('v_rsq_f32 v%d, v%d' % (q1, q1))
        a('v_mul_f32 v%d, v%d, v%d' % (q1, q1, s1))
        sc = q1
    p = tmp + 6
    assert p % 2 == 0
    a('v_mov_b32 v%d, v%d' % (p, sc)); a('v_mov_b32 v%d, v%d' % (p + 1, sc))
    a('v_mul_f32 v%d, v%d, v%d' % (p + 2, s0, sc)); a('v_sub_f32 v%d, 0, v%d' % (p + 2, p + 2)); a('v_mov_b32 v%d, v%d' % (p + 3, p + 2))
    u = tmp + 10
    for i in range(56):
        x = ACT + i
        uu = u + 2 * (i & 1)
        a('v_lshlrev_b32 v%d, 16, v%d' % (uu, x))
        a('v_and_b32 v%d, 0xffff0000, v%d' % (uu + 1, x))
        a('v_pk_fma_f32 v[%d:%d], v[%d:%d], v[%d:%d], v[%d:%d]' % (uu, uu + 1, uu, uu + 1, p, p + 1, p + 2, p + 3))
        a('v_cvt_pk_bf16_f32 v%d, v%d, v%d' % (x, uu, uu + 1))

CS = 163328
ONES = 232
def ln_stats(mode, tmp):
    s0, s1, q0, q1 = tmp, tmp + 1, tmp + 2, tmp + 3
    for r in (s0, s1, q0, q1): a('v_mov_b32 v%d, 0' % r)
    for i in range(56):
        x = ACT + i
        a('v_dot2_f32_bf16 v%d, v%d, v%d, v%d' % ((s0, s1)[i & 1], x, ONES, (s0, s1)[i & 1]))
        a('v_dot2_f32_bf16 v%d, v%d, v%d, v%d' % ((q0, q1)[i & 1], x, x, (q0, q1)[i & 1]))
    a('v_add_f32 v%d, v%d, v%d' % (s0, s0, s1))
    a('v_add_f32 v%d, v%d, v%d' % (q0, q0, q1))
    allreduce_g(s0, tmp + 5, 'v_add_f32')
    allreduce_g(q0, tmp + 5, 'v_add_f32')
    a('v_mul_f32 v%d, %s, v%d' % (s0, f32hex(1.0 / D), s0))
    a('v_mul_f32 v%d, %s, v%d' % (q0, f32hex(1.0 / D), q0))
    a('v_fma_f32 v%d, -v%d, v%d, v%d' % (q0, s0, s0, q0))
    a('v_max_f32 v%d, 0, v%d' % (q0, q0))
    a('v_add_f32 v%d, %s, v%d' % (s1, f32hex(1e-5), q0))
    a('v_rsq_f32 v%d, v%d' % (s1, s1))
    if mode == 2:
        a('v_mul_f32 v%d, v%d, v%d' % (q1, s1, s1))
        a('v_mul_f32 v%d, v%d, v%d' % (q1, q1, q0))
        a('v_add_f32 v%d, %s, v%d' % (q1, f32hex(1e-5), q1))
        a('v_rsq_f32 v%d, v%d' % (q1, q1))
        a('v_mul_f32 v%d, v%d, v%d' % (q0, q1, s1))
    else:
        a('v_mov_b32 v%d, v%d' % (q0, s1))
    a('v_mul_f32 v%d, v%d, v%d' % (q1, s0, q0))
    a('v_sub_f32 v%d, 0, v%d' % (q1, q1))

def colsum_prepass(NT, wbase, typeB):
    RS = 128 if typeB else 32 * NT
    l = newlbl('cs')
    a('s_sub_u32 s10, s5, 1')
    a('s_cmp_ge_u32 s10, %d' % NT)
    a('s_cbranch_scc1 %s' % l)
    a('v_lshl_add_u32 v8, v3, 3, v4')
    a('v_mul_u32_u24 v8, %d, v8' % RS)
    a('v_lshl_add_u32 v8, v5, 3, v8')
    if typeB:
        a('v_lshrrev_b32 v9, 1, v4')
        a('v_and_b32 v10, 1, v3')
        a('v_lshl_or_b32 v9, v10, 1, v9')
    else:
        a('v_and_b32 v9, 1, v3')
        if NT % 2:
            a('s_cmp_eq_u32 s10, %d' % (NT - 1))
            a('s_cselect_b32 s11, 0, 1')
            a('v_and_b32 v9, s11, v9')
    a('v_xor_b32 v9, s10, v9')
    a('v_lshl_add_u32 v8, v9, 5, v8')
    a('v_add_u32 v8, %d, v8' % wbase)
    a('v_add_u32 v9, 61440, v8')
    for i in range(4): a('v_mov_b32 v%d, 0' % (12 + i))
    B0 = FRG
    for t in range(14):
        for h in range(2):
            off = (32 * t + 4 * h) * RS
            if off >= 61440: a('ds_read_b64_tr_b16 v[%d:%d], v9 offset:%d' % (B0 + 4 * t + 2 * h, B0 + 4 * t + 2 * h + 1, off - 61440))
            else: a('ds_read_b64_tr_b16 v[%d:%d], v8 offset:%d' % (B0 + 4 * t + 2 * h, B0 + 4 * t + 2 * h + 1, off))
        if t == 6 or t == 13:
            a('s_waitcnt lgkmcnt(0)')
            for tt in range(t - 6, t + 1):
                a('v_mfma_f32_16x16x32_bf16 v[12:15], %s, %s, v[12:15]' % (vr(B0 + 4 * tt), vr(ONES)))
    a('s_lshl_b32 s10, s10, 6')
    a('v_lshlrev_b32 v8, 4, v3')
    a('v_add_u32 v8, s10, v8')
    a('v_add_u32 v8, %d, v8' % CS)
    a('s_mov_b32 exec_lo, 0x00010001'); a('s_mov_b32 exec_hi, 0x00010001')
    a('ds_write_b128 v8, v[12:15]')
    a('s_mov_b64 exec, -1')
    a('s_waitcnt lgkmcnt(0)')
    a.label(l)

def cs_read(tiles, dst, tile0_sgpr=None):
    a('v_lshlrev_b32 v9, 4, v3')
    if tile0_sgpr:
        a('s_lshl_b32 s10, %s, 7' % tile0_sgpr)
        a('v_add_u32 v9, s10, v9')
    a('v_add_u32 v9, %d, v9' % CS)
    for i, T in enumerate(tiles):
        a('ds_read_b128 %s, v9 offset:%d' % (vr(dst + 4 * i), 64 * T))

def ln_apply(acc, n, cs, st):
    for i in range(n):
        a('v_mul_f32 v%d, v%d, v%d' % (acc + i, acc + i, st + 2))
        a('v_fmac_f32 v%d, v%d, v%d' % (acc + i, cs + i, st + 3))

def gemm_setup_addr(NT, ldsbase, tmp, extra_e, extra_o, K, plain=None):
    RS = 32 * NT
    a('v_lshl_add_u32 v%d, v3, 3, v4' % tmp)
    a('v_mul_u32_u24 v%d, %d, v%d' % (tmp, RS, tmp))
    a('v_lshl_add_u32 v%d, v5, 3, v%d' % (tmp, tmp))
    if ldsbase: a('v_add_u32 v%d, 0x%x, v%d' % (tmp, ldsbase, tmp))
    dp = None
    if plain is not None:
        a('v_mov_b32 v%d, v%d' % (plain[0], tmp))
        dp = DsBase(plain[0], plain[1:]); dp.prep(K * RS)
    a('v_and_b32 v%d, 1, v3' % (tmp + 1))
    a('v_lshlrev_b32 v%d, 5, v%d' % (tmp + 1, tmp + 1))
    a('v_sub_u32 v%d, v%d, v%d' % (tmp + 2, tmp, tmp + 1))
    a('v_add_u32 v%d, v%d, v%d' % (tmp, tmp, tmp + 1))
    a('v_mov_b32 v%d, v%d' % (tmp + 1, tmp + 2))
    de = DsBase(tmp, extra_e); do = DsBase(tmp + 1, extra_o)
    de.prep(K * RS); do.prep(K * RS)
    de.plain = dp
    return de, do

def gemm_reads(de, do, NT, t, fr):
    RS = 32 * NT
    for T in range(NT):
        for h in range(2):
            b = de if T % 2 == 0 else do
            if NT % 2 and T == NT - 1: b = de.plain
            r, o = b.at((32 * t + 4 * h) * RS + 32 * T)
            a('ds_read_b64_tr_b16 v[%d:%d], %s offset:%d' % (fr + 4 * T + 2 * h, fr + 4 * T + 2 * h + 1, r, o))

def gemm_loop(de, do, NT, steps, acc=ACC, frg=FRG):
    fsz = 4 * NT
    for i in range(4 * NT): a('v_mov_b32 v%d, 0' % (acc + i))
    gemm_reads(de, do, NT, 0, frg)
    for t in range(steps):
        cur = frg + fsz * (t & 1); nxt = frg + fsz * ((t + 1) & 1)
        if t + 1 < steps:
            gemm_reads(de, do, NT, t + 1, nxt)
            a('s_waitcnt lgkmcnt(%d)' % min(15, 2 * NT))
        else:
            a('s_waitcnt lgkmcnt(0)')
        for T in range(NT):
            a('v_mfma_f32_16x16x32_bf16 %s, %s, %s, %s' % (vr(acc + 4 * T), vr(cur + 4 * T), vr(ACT + 4 * t), vr(acc + 4 * T)))

def gelu(x, t):
    ca = -2 * LOG2E * 0.7978845608028654
    cb = ca * 0.044715
    a('v_mul_f32 v%d, v%d, v%d' % (t, x, x))
    a('v_mov_b32 v%d, %s' % (t + 1, f32hex(ca)))
    a('v_fmac_f32 v%d, %s, v%d' % (t + 1, f32hex(cb), t))
    a('v_mul_f32 v%d, v%d, v%d' % (t, t + 1, x))
    a('v_exp_f32 v%d, v%d' % (t, t))
    a('v_add_f32 v%d, 1.0, v%d' % (t, t))
    a('v_rcp_f32 v%d, v%d' % (t, t))
    a('v_mul_f32 v%d, v%d, v%d' % (x, x, t))

def unpack4(src, dst):
    a('v_lshlrev_b32 v%d, 16, v%d' % (dst, src))
    a('v_and_b32 v%d, 0xffff0000, v%d' % (dst + 1, src))
    a('v_lshlrev_b32 v%d, 16, v%d' % (dst + 2, src + 1))
    a('v_and_b32 v%d, 0xffff0000, v%d' % (dst + 3, src + 1))

def typeA_rows():
    a('s_lshl_b32 s8, s3, 7')
    a('s_lshl_b32 s9, s5, 4')
    a('s_add_u32 s8, s8, s9')
    a('v_add_u32 v7, s8, v2')

def A_regs_path(srdn, atr, issue_only=False):
    a('s_mul_i32 s10, s8, 896')
    a('v_lshlrev_b32 v8, 4, v1')
    a('v_add_u32 v8, s10, v8')
    for i in range(14):
        a('s_mov_b32 s10, %d' % (i * 1024))
        a('buffer_load_dwordx4 %s, v8, s[%d:%d], s10 offen' % (vr(WST + 4 * i), srdn, srdn + 3))
    if issue_only: return
    A_regs_consume(atr)

def A_regs_consume(atr):
    a('s_mul_i32 s11, s5, 7168')
    a('s_add_u32 s11, s11, %d' % atr)
    a('v_and_b32 v9, 8, v2')
    a('v_mul_u32_u24 v9, 896, v9')
    a('v_sub_u32 v10, v%d, v9' % FAE)
    a('v_sub_u32 v11, v%d, v9' % FAO)
    a('v_add_u32 v10, s11, v10')
    a('v_add_u32 v11, s11, v11')
    for ph in range(2):
        for i in range(7):
            if ph == 0:
                a('v_add_u32 v%d, s11, v%d' % (MISC + i, OFFS + i))
            else:
                a('v_xor_b32 v%d, 64, v%d' % (MISC + i, OFFS + i))
                a('v_add_u32 v%d, s11, v%d' % (MISC + i, MISC + i))
        for i in range(7):
            a('s_waitcnt vmcnt(%d)' % (13 - (7 * ph + i)))
            a('ds_write_b128 v%d, %s' % (MISC + i, vr(WST + 4 * (7 * ph + i))))
        a('s_waitcnt lgkmcnt(0)')
        if ph == 0:
            a('s_mov_b32 exec_lo, 0x00ff00ff'); a('s_mov_b32 exec_hi, 0x00ff00ff')
        else:
            a('s_mov_b32 exec_lo, 0xff00ff00'); a('s_mov_b32 exec_hi, 0xff00ff00')
        for t in range(14):
            a('ds_read_b128 %s, v%d offset:%d' % (vr(ACT + 4 * t), 10 + (t & 1), (t >> 1) * 128))
        a('s_waitcnt lgkmcnt(0)')
        a('s_mov_b64 exec, -1')

def typeB_rows():
    a('s_lshl_b32 s8, s6, 6')
    a('s_lshr_b32 s9, s5, 1')
    a('s_lshl_b32 s9, s9, 4')
    a('s_add_u32 s8, s8, s9')
    a('v_add_u32 v7, s8, v2')
    a('s_and_b32 s13, s5, 1')

def A_dma_addr(shifted=False):
    a('s_lshl_b32 s10, s6, 6')
    a('s_lshl_b32 s11, s5, 3')
    a('s_add_u32 s10, s10, s11')
    a('s_mul_i32 s10, s10, 896')
    a('s_and_b32 s11, s5, 1')
    a('s_lshl_b32 s11, s11, 6')
    for i in range(7):
        r = MISC + i
        a('v_xor_b32 v%d, s11, v%d' % (r, OFFS + i))
        if shifted:
            m56_, sh56_ = magic_div(56, 448)
            m14_, sh14_ = magic_div(14, 64)
            a('v_lshrrev_b32 v%d, 4, v%d' % (MISC + 11, r))
            a('v_mul_u32_u24 v%d, %d, v%d' % (MISC + 8, m56_, MISC + 11))
            a('v_lshrrev_b32 v%d, %d, v%d' % (MISC + 8, sh56_, MISC + 8))
            a('v_mul_u32_u24 v%d, 56, v%d' % (MISC + 8, MISC + 8))
            a('v_sub_u32 v%d, v%d, v%d' % (MISC + 8, MISC + 11, MISC + 8))
            a('v_mul_u32_u24 v%d, %d, v%d' % (MISC + 8, m14_, MISC + 8))
            a('v_lshrrev_b32 v%d, %d, v%d' % (MISC + 8, sh14_, MISC + 8))
            a('v_lshrrev_b32 v%d, 1, v%d' % (MISC + 9, MISC + 8))
            a('v_add_u32 v%d, 1, v%d' % (MISC + 9, MISC + 9))
            a('v_mul_u32_u24 v%d, 896, v%d' % (MISC + 9, MISC + 9))
            a('v_and_b32 v%d, 1, v%d' % (MISC + 8, MISC + 8))
            a('v_cmp_eq_u32 vcc, 1, v%d' % (MISC + 8))
            a('v_sub_u32 v%d, 0, v%d' % (MISC + 10, MISC + 9))
            a('v_cndmask_b32 v%d, v%d, v%d, vcc' % (MISC + 9, MISC + 10, MISC + 9))
            a('v_add_u32 v%d, v%d, v%d' % (r, r, MISC + 9))
        a('v_add_u32 v%d, s10, v%d' % (r, r))

def A_dma_issue(srdn, areg):
    a('s_mul_i32 s12, s5, 7168')
    a('s_add_u32 s12, s12, %d' % areg)
    for i in range(7):
        a('s_add_u32 m0, s12, %d' % (i * 1024))
        a('buffer_load_dwordx4 v%d, s[%d:%d], 0 offen lds' % (MISC + i, srdn, srdn + 3))

def A_frag_read(areg):
    a('s_lshr_b32 s10, s5, 1')
    a('s_mul_i32 s10, s10, 14336')
    a('s_add_u32 s10, s10, %d' % areg)
    a('v_add_u32 v10, s10, v%d' % FAE)
    a('v_add_u32 v11, s10, v%d' % FAO)
    for t in range(14):
        a('ds_read_b128 %s, v%d offset:%d' % (vr(ACT + 4 * t), 10 + (t & 1), (t >> 1) * 128))

def W_dma64(srdn, wreg, K, krow0=0, wstride=896):
    a('v_lshrrev_b32 v8, 3, v1')
    a('s_lshl_b32 s10, s5, 3')
    a('v_add_u32 v8, s10, v8')
    a('s_mov_b32 s10, %d' % wstride)
    a('v_mul_lo_u32 v8, v8, s10')
    a('v_bfe_u32 v9, v1, 4, 1')
    a('s_and_b32 s10, s5, 1')
    a('s_lshl_b32 s10, s10, 1')
    a('v_or_b32 v9, s10, v9')
    a('v_bfe_u32 v10, v1, 1, 2')
    a('v_xor_b32 v9, v9, v10')
    a('v_lshlrev_b32 v9, 5, v9')
    a('v_and_b32 v10, 1, v1')
    a('v_lshlrev_b32 v10, 4, v10')
    a('v_add3_u32 v8, v8, v9, v10')
    a('s_lshl_b32 s10, s7, 7')
    a('s_add_u32 s10, s10, %d' % (krow0 * wstride))
    a('v_add_u32 v8, s10, v8')
    a('s_lshl_b32 s12, s5, 10')
    a('s_add_u32 s12, s12, %d' % wreg)
    for i in range(K // 64):
        a('s_add_u32 m0, s12, %d' % (i * 8192))
        a('s_mov_b32 s10, %d' % (i * 64 * wstride))
        a('buffer_load_dwordx4 v8, s[%d:%d], s10 offen lds' % (srdn, srdn + 3))

def tr_bases64(wreg, r0):
    a('v_lshl_add_u32 v%d, v3, 3, v4' % r0)
    a('v_lshlrev_b32 v%d, 7, v%d' % (r0, r0))
    a('v_lshl_add_u32 v%d, v5, 3, v%d' % (r0, r0))
    a('v_add_u32 v%d, %d, v%d' % (r0, wreg, r0))
    a('v_lshrrev_b32 v%d, 1, v4' % (r0 + 2))
    a('v_and_b32 v%d, 1, v3' % (r0 + 3))
    a('v_lshl_or_b32 v%d, v%d, 1, v%d' % (r0 + 2, r0 + 3, r0 + 2))
    a('s_lshl_b32 s10, s13, 1')
    a('v_xor_b32 v%d, s10, v%d' % (r0 + 3, r0 + 2))
    a('v_lshl_add_u32 v%d, v%d, 5, v%d' % (r0 + 1, r0 + 3, r0))
    a('v_xor_b32 v%d, 1, v%d' % (r0 + 3, r0 + 3))
    a('v_lshl_add_u32 v%d, v%d, 5, v%d' % (r0 + 3, r0 + 3, r0))
    a('v_mov_b32 v%d, v%d' % (r0, r0 + 1))
    a('v_mov_b32 v%d, v%d' % (r0 + 1, r0 + 3))

def gemm64(rb, steps=14):
    def reads(t, fr):
        for T in range(2):
            for h in range(2):
                a('ds_read_b64_tr_b16 v[%d:%d], v%d offset:%d' % (fr + 4 * T + 2 * h, fr + 4 * T + 2 * h + 1, rb + T, (32 * t + 4 * h) * 128))
    for i in range(8): a('v_mov_b32 v%d, 0' % (ACC + i))
    reads(0, FRG); reads(1, FRG + 8)
    for t in range(steps):
        cur = FRG + 8 * (t % 3)
        if t + 2 < steps:
            reads(t + 2, FRG + 8 * ((t + 2) % 3))
            a('s_waitcnt lgkmcnt(8)')
        elif t + 1 < steps:
            a('s_waitcnt lgkmcnt(4)')
        else:
            a('s_waitcnt lgkmcnt(0)')
        for T in range(2):
            a('v_mfma_f32_16x16x32_bf16 %s, %s, %s, %s' % (vr(ACC + 4 * T), vr(cur + 4 * T), vr(ACT + 4 * t), vr(ACC + 4 * T)))

def swap16(pk):
    a('v_permlane16_swap_b32 v%d, v%d' % (pk, pk + 2))
    a('v_permlane16_swap_b32 v%d, v%d' % (pk + 1, pk + 3))

def st16_addr(dst, src):
    a('v_lshlrev_b32 v%d, 3, v3' % dst)
    a('v_sub_u32 v%d, v%d, v%d' % (dst, src, dst))
    a('v_and_b32 v%d, 1, v3' % (TMPA))
    a('v_lshl_add_u32 v%d, v%d, 5, v%d' % (dst, TMPA, dst))
    a('v_lshrrev_b32 v%d, 1, v3' % (TMPA))
    a('v_lshl_add_u32 v%d, v%d, 4, v%d' % (dst, TMPA, dst))

def out_addrB(reg):
    a('s_mov_b32 s10, 896')
    a('v_mul_lo_u32 v%d, v7, s10' % reg)
    a('s_lshl_b32 s10, s7, 7')
    a('s_lshl_b32 s11, s13, 6')
    a('s_add_u32 s10, s10, s11')
    a('v_lshlrev_b32 v%d, 3, v3' % (reg + 1))
    a('v_add3_u32 v%d, v%d, v%d, s10' % (reg, reg, reg + 1))

def softmax_pair(p, outp, tmp):
    mx, mn, t, sp, sm = tmp, tmp + 1, tmp + 2, tmp + 3, tmp + 4
    em = tmp + 6
    for i in range(4):
        a('v_cndmask_b32 v%d, v%d, v%d, s[60:61]' % (p + 4 + i, p + 4 + i, p))
    a('v_max3_f32 v%d, v%d, v%d, v%d' % (mx, p, p + 1, p + 2))
    a('v_max3_f32 v%d, v%d, v%d, v%d' % (mx, mx, p + 3, p + 4))
    a('v_max3_f32 v%d, v%d, v%d, v%d' % (mx, mx, p + 5, p + 6))
    a('v_max_f32 v%d, v%d, v%d' % (mx, mx, p + 7))
    a('v_min3_f32 v%d, v%d, v%d, v%d' % (mn, p, p + 1, p + 2))
    a('v_min3_f32 v%d, v%d, v%d, v%d' % (mn, mn, p + 3, p + 4))
    a('v_min3_f32 v%d, v%d, v%d, v%d' % (mn, mn, p + 5, p + 6))
    a('v_min_f32 v%d, v%d, v%d' % (mn, mn, p + 7))
    allreduce_g(mx, t, 'v_max_f32')
    allreduce_g(mn, t, 'v_min_f32')
    a('v_mov_b32 v%d, %s' % (t, f32hex(LOG2E)))
    for i in range(8):
        a('v_sub_f32 v%d, v%d, v%d' % (em + i, mn, p + i))
        a('v_sub_f32 v%d, v%d, v%d' % (p + i, p + i, mx))
        a('v_mul_f32 v%d, v%d, v%d' % (em + i, em + i, t))
        a('v_mul_f32 v%d, v%d, v%d' % (p + i, p + i, t))
        a('v_exp_f32 v%d, v%d' % (em + i, em + i))
        a('v_exp_f32 v%d, v%d' % (p + i, p + i))
    for i in range(4, 8):
        a('v_cndmask_b32 v%d, v%d, 0, s[60:61]' % (p + i, p + i))
        a('v_cndmask_b32 v%d, v%d, 0, s[60:61]' % (em + i, em + i))
    a('v_add_f32 v%d, v%d, v%d' % (sp, p, p + 1)); a('v_add_f32 v%d, v%d, v%d' % (sm, em, em + 1))
    for i in range(2, 8):
        a('v_add_f32 v%d, v%d, v%d' % (sp, sp, p + i)); a('v_add_f32 v%d, v%d, v%d' % (sm, sm, em + i))
    allreduce_g(sp, t, 'v_add_f32')
    allreduce_g(sm, t, 'v_add_f32')
    a('v_rcp_f32 v%d, v%d' % (sp, sp)); a('v_rcp_f32 v%d, v%d' % (sm, sm))
    for i in range(8):
        a('v_mul_f32 v%d, v%d, v%d' % (p + i, p + i, sp))
        a('v_mul_f32 v%d, v%d, v%d' % (em + i, em + i, sm))
    for i in range(4):
        a('v_cvt_pk_bf16_f32 v%d, v%d, v%d' % (outp + i, p + 2 * i, p + 2 * i + 1))
        a('v_cvt_pk_bf16_f32 v%d, v%d, v%d' % (outp + 4 + i, em + 2 * i, em + 2 * i + 1))

def set_target(n):
    a('s_add_u32 s14, s72, %d' % n)

S1SEGS = [(0, 56, 4), (896, 56, 4), (1792, 56, 4)]
def stage_S1():
    CUR['sc'] = ' sc1'
    NT = 6
    typeA_rows()
    srd(40, 'wqkv', 0, D * 3 * D * 2)
    srd(44, 'xsrc', 0, SZ_X)
    srd(48, 'wphi', 0, H * DH * DH * 2)
    lsrd(52, 'KVP', SZ_KVP)
    a('v_and_b32 v8, 255, v0')
    a('v_lshrrev_b32 v9, 3, v8')
    a('v_and_b32 v10, 7, v8')
    a('v_mul_u32_u24 v11, 56, v9')
    a('v_lshl_add_u32 v11, v10, 3, v11')
    a('s_mul_i32 s10, s4, 1568')
    a('v_add_u32 v11, s10, v11')
    a('v_cmp_gt_u32 vcc, 28, v9')
    a('v_cmp_gt_u32 s[62:63], 7, v10')
    a('s_and_b64 vcc, vcc, s[62:63]')
    a('v_mov_b32 v12, 0x7fffffff')
    a('v_cndmask_b32 v11, v12, v11, vcc')
    a('buffer_load_dwordx2 v[%d:%d], v11, s[48:51], 0 offen' % (MISC + 4, MISC + 5))
    a('v_lshlrev_b32 v%d, 3, v8' % (MISC + 6))
    lw = newlbl('s1w')
    a('s_cmp_lg_u32 s75, 0')
    a('s_cbranch_scc1 %s' % lw)
    W_dma_generic(40, 3 * D * 2, D, NT, S1SEGS, S1_W)
    a.label(lw)
    a('s_mov_b32 s75, 0')
    la = newlbl('s1a')
    a('s_cmp_lg_u32 s64, 0')
    a('s_cbranch_scc1 %s' % la)
    A_regs_path(44, S1_ATR, issue_only=True)
    a('s_waitcnt vmcnt(14)')
    lb_ = newlbl('s1b')
    a('s_branch %s' % lb_)
    a.label(la)
    a('s_waitcnt vmcnt(0)')
    a.label(lb_)
    a('v_add_u32 v%d, 0x%x, v%d' % (MISC + 6, S1_WPHI, MISC + 6))
    a('ds_write_b64 v%d, v[%d:%d]' % (MISC + 6, MISC + 4, MISC + 5))
    a('s_waitcnt lgkmcnt(0)')
    a('s_barrier')
    stamp()
    colsum_prepass(NT, S1_W, False)
    lz = newlbl('zi')
    a('s_or_b32 s10, s64, s5')
    a('s_cmp_lg_u32 s10, 0')
    a('s_cbranch_scc1 %s' % lz)
    srd(56, 'ws', 0, 64 * MB)
    a('s_lshl_b32 s10, s4, 13'); a('s_lshl_b32 s11, s3, 9'); a('s_add_u32 s10, s10, s11')
    a('v_lshrrev_b32 v8, 5, v1'); a('v_lshlrev_b32 v8, 25, v8')
    a('v_and_b32 v9, 31, v1'); a('v_lshl_add_u32 v8, v9, 4, v8')
    a('v_add_u32 v8, s10, v8')
    for i in range(4): a('v_mov_b32 v%d, 0' % (12 + i))
    a('buffer_store_dwordx4 v[12:15], v8, s[56:59], 0 offen sc1')
    a('s_waitcnt vmcnt(0)')
    a.label(lz)
    lskip = newlbl('s1nodep'); lj = newlbl('s1j')
    a('s_cmp_eq_u32 s64, 0')
    a('s_cbranch_scc1 %s' % lskip)
    a('s_lshl_b32 s62, s3, 1'); a('s_add_u32 s63, s62, 1')
    wait_dep(6, ['s62', 's63'], 7, prev_layer=True)
    A_regs_path(44, S1_ATR, issue_only=True)
    a('s_branch %s' % lj)
    a.label(lskip)
    a('s_barrier')
    a.label(lj)
    stamp()
    A_regs_consume(S1_ATR)
    lz2 = newlbl('zf')
    a('s_or_b32 s10, s64, s5')
    a('s_cmp_lg_u32 s10, 0')
    a('s_cbranch_scc1 %s' % lz2)
    get_tag()
    a('s_lshl_b32 s10, s4, 7'); a('s_lshl_b32 s11, s3, 3'); a('s_add_u32 s10, s10, s11'); a('s_add_u32 s10, s10, %d' % (7 * 4096))
    a('v_mov_b32 v8, s10'); a('v_mov_b32 v10, s90'); a('v_mov_b32 v11, s91')
    a('s_mov_b64 exec, 1')
    a('buffer_store_dwordx2 v[10:11], v8, s[92:95], 0 offen sc1')
    a('s_mov_b64 exec, -1')
    a.label(lz2)
    stamp()
    de, do = gemm_setup_addr(NT, S1_W, 10, [MISC], [MISC + 1], D)
    ST = MISC + 4
    ln_stats(1, ST)
    stamp()
    gemm_loop(de, do, NT, 14)
    cs_read(range(6), WST)
    a('s_waitcnt lgkmcnt(0)')
    ln_apply(ACC, 24, WST, ST)
    stamp()
    WA = 16; QB = 24; KB = 28; PQ = 32; PK = 40; PHK = 56; VP = 64; TMP = 72
    a('v_lshl_add_u32 v8, v3, 2, v4')
    a('v_lshlrev_b32 v8, 6, v8')
    a('v_lshl_add_u32 v8, v5, 3, v8')
    a('v_add_u32 v8, 0x%x, v8' % S1_WPHI)
    for Fi in range(2):
        for h in range(2):
            a('ds_read_b64_tr_b16 v[%d:%d], v8 offset:%d' % (WA + 4 * Fi + 2 * h, WA + 4 * Fi + 2 * h + 1, h * 1024 + Fi * 32))
    for i in range(4):
        a('v_cvt_pk_bf16_f32 v%d, v%d, v%d' % (QB + i, ACC + 2 * i, ACC + 2 * i + 1))
        a('v_cvt_pk_bf16_f32 v%d, v%d, v%d' % (KB + i, ACC + 8 + 2 * i, ACC + 8 + 2 * i + 1))
    a('v_cndmask_b32 v%d, v%d, 1.0, s[60:61]' % (ACC + 20, ACC + 20))
    for i in range(1, 4):
        a('v_cndmask_b32 v%d, v%d, 0, s[60:61]' % (ACC + 20 + i, ACC + 20 + i))
    for i in range(4):
        a('v_cvt_pk_bf16_f32 v%d, v%d, v%d' % (VP + i, ACC + 16 + 2 * i, ACC + 16 + 2 * i + 1))
    for i in range(16): a('v_mov_b32 v%d, 0' % (PQ + i))
    a('s_waitcnt lgkmcnt(0)')
    for Fi in range(2):
        a('v_mfma_f32_16x16x32_bf16 %s, %s, %s, %s' % (vr(PK + 4 * Fi), vr(WA + 4 * Fi), vr(KB), vr(PK + 4 * Fi)))
        a('v_mfma_f32_16x16x32_bf16 %s, %s, %s, %s' % (vr(PQ + 4 * Fi), vr(WA + 4 * Fi), vr(QB), vr(PQ + 4 * Fi)))
    softmax_pair(PK, PHK, TMP)
    l1 = newlbl('zp'); l2 = newlbl('zq')
    a('s_cmp_lg_u32 s64, 0')
    a('s_cbranch_scc1 %s' % l1)
    wait_dep(7, ['s4'], 16)
    a('s_branch %s' % l2)
    a.label(l1)
    a('s_barrier')
    a.label(l2)
    a('s_lshl_b32 s10, s5, 4')
    a('v_add_u32 v9, s10, v2')
    a('v_lshlrev_b32 v10, 7, v9')
    a('v_lshl_add_u32 v10, v3, 4, v10')
    a('v_add_u32 v10, 0x%x, v10' % S1_PHIK)
    a('ds_write_b128 v10, %s' % vr(PHK))
    a('ds_write_b128 v10, %s offset:64' % vr(PHK + 4))
    a('v_lshlrev_b32 v10, 6, v9')
    a('v_lshl_add_u32 v10, v3, 4, v10')
    a('v_add_u32 v10, 0x%x, v10' % S1_VV)
    a('ds_write_b128 v10, %s' % vr(VP))
    a('s_waitcnt lgkmcnt(0)')
    a('s_barrier')
    a('v_lshl_add_u32 v8, v3, 3, v4')
    a('s_and_b32 s10, s5, 1')
    a('s_lshl_b32 s10, s10, 5')
    a('s_add_u32 s10, s10, 0x%x' % S1_VV)
    a('v_lshlrev_b32 v9, 6, v8')
    a('v_lshl_add_u32 v9, v5, 3, v9')
    a('v_add_u32 v9, s10, v9')
    a('s_lshr_b32 s10, s5, 1')
    a('s_lshl_b32 s10, s10, 5')
    a('s_add_u32 s10, s10, 0x%x' % S1_PHIK)
    a('v_lshlrev_b32 v10, 7, v8')
    a('v_lshl_add_u32 v10, v5, 3, v10')
    a('v_add_u32 v10, s10, v10')
    KA = 96; KBf = 112; KD = 128
    for t in range(4):
        for h in range(2):
            a('ds_read_b64_tr_b16 v[%d:%d], v9 offset:%d' % (KA + 4 * t + 2 * h, KA + 4 * t + 2 * h + 1, (32 * t + 4 * h) * 64))
            a('ds_read_b64_tr_b16 v[%d:%d], v10 offset:%d' % (KBf + 4 * t + 2 * h, KBf + 4 * t + 2 * h + 1, (32 * t + 4 * h) * 128))
    for i in range(4): a('v_mov_b32 v%d, 0' % (KD + i))
    a('s_waitcnt lgkmcnt(0)')
    for t in range(4):
        a('v_mfma_f32_16x16x32_bf16 %s, %s, %s, %s' % (vr(KD), vr(KA + 4 * t), vr(KBf + 4 * t), vr(KD)))
    a('s_lshl_b32 s10, s4, 13')
    a('s_and_b32 s11, s5, 1'); a('s_lshl_b32 s11, s11, 12'); a('s_add_u32 s10, s10, s11')
    a('s_lshr_b32 s11, s5, 1'); a('s_lshl_b32 s11, s11, 6'); a('s_add_u32 s10, s10, s11')
    a('v_lshlrev_b32 v8, 10, v3')
    a('v_lshl_add_u32 v8, v2, 2, v8')
    a('v_add_u32 v8, s10, v8')
    for i in range(4):
        a('buffer_atomic_add_f32 v%d, v8, s[52:55], 0 offen offset:%d' % (KD + i, 256 * i))
    softmax_pair(PQ, PHQ, TMP)
    get_tag()
    signal(0, ['s4'], 's3')
    stamp()

def stage_S2a():
    CUR['sc'] = '' if FAST else ' sc1'
    lsrd(40, 'KVP', SZ_KVP)
    lsrd(52, 'O', SZ_X)
    lsk = newlbl('nopf')
    a('s_cmp_eq_u32 s74, 0')
    a('s_cbranch_scc1 %s' % lsk)
    srd(44, 'wo', 0, D * D * 2)
    W_dma64(44, R0, D)
    a.label(lsk)
    wait_dep(0, ['s4'], 16)
    stamp()
    a('s_lshl_b32 s10, s4, 13')
    a('v_lshlrev_b32 v8, 4, v0')
    a('v_add_u32 v8, s10, v8')
    PT = 72
    a('buffer_load_dwordx4 %s, v8, s[40:43], 0 offen' % vr(PT))
    a('s_waitcnt vmcnt(0)')
    a('v_cvt_pk_bf16_f32 v%d, v%d, v%d' % (PT + 4, PT, PT + 1))
    a('v_cvt_pk_bf16_f32 v%d, v%d, v%d' % (PT + 5, PT + 2, PT + 3))
    a('v_lshlrev_b32 v9, 3, v0')
    a('v_add_u32 v9, %d, v9' % S2A_KV)
    a('ds_write_b64 v9, v[%d:%d]' % (PT + 4, PT + 5))
    a('s_waitcnt lgkmcnt(0)')
    a('s_barrier')
    a('v_lshlrev_b32 v9, 7, v2')
    a('v_lshl_add_u32 v9, v3, 4, v9')
    a('v_add_u32 v9, %d, v9' % S2A_KV)
    AF = 24; OD = 40
    for Tm in range(2):
        for u in range(2):
            a('ds_read_b128 %s, v9 offset:%d' % (vr(AF + 8 * Tm + 4 * u), Tm * 2048 + u * 64))
    for i in range(8): a('v_mov_b32 v%d, 0' % (OD + i))
    a('s_waitcnt lgkmcnt(0)')
    for u in range(2):
        for Tm in range(2):
            a('v_mfma_f32_16x16x32_bf16 %s, %s, %s, %s' % (vr(OD + 4 * Tm), vr(AF + 8 * Tm + 4 * u), vr(PHQ + 4 * u), vr(OD + 4 * Tm)))
    a('v_cndmask_b32 v48, 0, v%d, s[60:61]' % (OD + 4))
    allreduce_g(48, 49, 'v_add_f32')
    a('v_add_f32 v48, %s, v48' % f32hex(1e-6))
    a('v_rcp_f32 v48, v48')
    for i in range(8): a('v_mul_f32 v%d, v%d, v48' % (OD + i, OD + i))
    for i in range(4): a('v_cvt_pk_bf16_f32 v%d, v%d, v%d' % (50 + i, OD + 2 * i, OD + 2 * i + 1))
    a('s_mov_b32 s10, 896')
    a('v_mul_lo_u32 v12, v7, s10')
    a('s_mul_i32 s10, s4, 56')
    a('v_and_b32 v13, 1, v3'); a('v_lshlrev_b32 v13, 5, v13')
    a('v_lshrrev_b32 v14, 1, v3'); a('v_lshlrev_b32 v14, 3, v14')
    a('v_add3_u32 v12, v12, v13, v14')
    a('v_add_u32 v12, s10, v12')
    a('buffer_store_dwordx2 v[50:51], v12, s[52:55], 0 offen' + CUR['sc'])
    a('s_mov_b32 exec_hi, 0x0000ffff')
    a('buffer_store_dwordx2 v[52:53], v12, s[52:55], 0 offen offset:16' + CUR['sc'])
    a('s_mov_b32 exec_hi, -1')
    a('s_lshl_b32 s62, s3, 1'); a('s_add_u32 s63, s62, 1')
    signal(1, ['s62', 's63'], 's4')
    stamp()

def stage_small(kind, wreg, areg, target, prefetch):
    CUR['sc'] = '' if (FAST and kind != 'w1') else ' sc1'
    typeB_rows()
    if kind == 'wo':
        lsrd(44, 'O', SZ_X); srd(48, 'xsrc', 0, SZ_X); lsrd(52, 'XP', SZ_X)
    elif kind == 'w1':
        lsrd(44, 'XP', SZ_X); lsrd(52, 'HH', SZ_X); lsrd(56, 'STATS', SZ_STATS)
    else:
        lsrd(44, 'HH', SZ_X); lsrd(48, 'XP', SZ_X); lsrd(52, 'X1', SZ_X); lsrd(56, 'STATS', SZ_STATS)
    st = {'wo': 1, 'w1': 2, 'w2': 3}[kind]
    A_dma_addr(shifted=(kind == 'w2'))
    if kind == 'w1':
        a('s_waitcnt vmcnt(0)')
        a('s_barrier')
        colsum_prepass(4, wreg, True)
    if kind == 'w2':
        a('s_sub_u32 s62, s6, 1'); a('s_max_i32 s62, s62, 0')
        a('s_add_u32 s63, s6, 1'); a('s_min_u32 s63, s63, 31')
        wait_dep(st, ['s6', 's62', 's63'], 7)
    else:
        wait_dep(st, ['s6'], 16 if kind == 'wo' else 7)
    stamp()
    A_dma_issue(44, areg)
    out_addrB(13)
    RES = 112
    if kind in ('wo', 'w2'):
        a('buffer_load_dwordx2 v[%d:%d], v13, s[48:51], 0 offen' % (RES, RES + 1))
        a('buffer_load_dwordx2 v[%d:%d], v13, s[48:51], 0 offen offset:32' % (RES + 2, RES + 3))
    if kind == 'w2':
        a('v_lshlrev_b32 v14, 3, v7')
        a('buffer_load_dwordx2 v[%d:%d], v14, s[56:59], 0 offen' % (RES + 4, RES + 5))
    tr_bases64(wreg, 120)
    a('s_waitcnt vmcnt(0)')
    a('s_barrier')
    stamp()
    A_frag_read(areg)
    a('s_waitcnt lgkmcnt(0)')
    a('s_barrier')
    prefetch()
    if kind == 'w1':
        ln_stats(2, MISC + 12)
        l = newlbl('nostat')
        a('s_or_b32 s10, s7, s13')
        a('s_cmp_lg_u32 s10, 0')
        a('s_cbranch_scc1 %s' % l)
        a('v_lshlrev_b32 v14, 3, v7')
        a('s_mov_b64 exec, 0xffff')
        a('buffer_store_dwordx2 v[%d:%d], v14, s[56:59], 0 offen sc1' % (MISC + 12, MISC + 13))
        a('s_mov_b64 exec, -1')
        a.label(l)
    stamp()
    gemm64(120)
    if kind == 'w1':
        cs_read([0, 1], 100, 's13')
        a('s_waitcnt lgkmcnt(0)')
        ln_apply(ACC, 8, 100, MISC + 12)
    stamp()
    T0 = MISC
    if kind == 'wo':
        unpack4(RES, T0); unpack4(RES + 2, T0 + 4)
        for i in range(8): a('v_add_f32 v%d, v%d, v%d' % (ACC + i, ACC + i, T0 + i))
    elif kind == 'w1':
        for i in range(8): gelu(ACC + i, T0 + 2 * (i & 3))
    else:
        unpack4(RES, T0); unpack4(RES + 2, T0 + 4)
        for i in range(8):
            a('v_sub_f32 v%d, v%d, v%d' % (T0 + i, T0 + i, RES + 4))
            a('v_fmac_f32 v%d, v%d, v%d' % (ACC + i, T0 + i, RES + 5))
    for i in range(4):
        a('v_cvt_pk_bf16_f32 v%d, v%d, v%d' % (T0 + 8 + i, ACC + 2 * i, ACC + 2 * i + 1))
    st16_addr(14, 13)
    swap16(T0 + 8)
    a(('buffer_store_dwordx4 %s, v14, s[52:55], 0 offen' + CUR['sc']) % vr(T0 + 8))
    signal(st + 1, ['s6'], 's7')
    stamp()

S5_W = R1
def stage_S5():
    CUR['sc'] = '' if FAST else ' sc1'
    NT = 7
    typeA_rows()
    srd(40, 'w3', 0, D * F * 2)
    lsrd(44, 'X1', SZ_X)
    lsrd(52, 'G', SZ_G)
    lpf = newlbl('s5pf')
    a('s_cmp_lg_u32 s74, 0')
    a('s_cbranch_scc1 %s' % lpf)
    W_dma_generic(40, F * 2, D, NT, [(0, 224, 14)], S5_W)
    a.label(lpf)
    a('s_waitcnt vmcnt(0)')
    a('s_barrier')
    stamp()
    colsum_prepass(NT, S5_W, False)
    a('s_lshl_b32 s62, s3, 1'); a('s_add_u32 s63, s62, 1')
    wait_dep(4, ['s62', 's63'], 7)
    stamp()
    A_regs_path(44, R0)
    stamp()
    ST = MISC + 12
    ln_stats(1, ST)
    de, do = gemm_setup_addr(NT, S5_W, 10, [MISC], [MISC + 1], D, plain=[MISC + 2, MISC + 3])
    a('s_mov_b32 s10, %d' % (F * 2))
    a('v_mul_lo_u32 v13, v7, s10')
    a('s_mul_i32 s10, s4, 224')
    a('v_lshlrev_b32 v14, 3, v3')
    a('v_add3_u32 v13, v13, v14, s10')
    stamp()
    gemm_loop(de, do, NT, 14)
    cs_read(range(7), WST)
    a('s_waitcnt lgkmcnt(0)')
    ln_apply(ACC, 28, WST, ST)
    stamp()
    T0 = MISC
    st16_addr(14, 13)
    PK = 16
    for T in range(NT):
        for i in range(4): gelu(ACC + 4 * T + i, T0 + 2 * i)
        a('v_cvt_pk_bf16_f32 v%d, v%d, v%d' % (PK + 2 * T, ACC + 4 * T, ACC + 4 * T + 1))
        a('v_cvt_pk_bf16_f32 v%d, v%d, v%d' % (PK + 2 * T + 1, ACC + 4 * T + 2, ACC + 4 * T + 3))
        if T & 1:
            swap16(PK + 2 * T - 2)
            a(('buffer_store_dwordx4 %s, v14, s[52:55], 0 offen offset:%d' + CUR['sc']) % (vr(PK + 2 * T - 2), 32 * (T - 1)))
    a(('buffer_store_dwordx2 v[%d:%d], v13, s[52:55], 0 offen offset:%d' + CUR['sc']) % (PK + 12, PK + 13, 32 * 6))
    a('s_lshl_b32 s62, s3, 1'); a('s_add_u32 s63, s62, 1')
    signal(5, ['s62', 's63'], 's4')
    stamp()

def stage_S6():
    NC = 14
    CUR['sc'] = '' if FAST else ' sc1'
    typeB_rows()
    srd(40, 'w4', 0, D * F * 2)
    lsrd(44, 'G', SZ_G)
    lsrd(48, 'XP', SZ_X)
    lsrd(56, 'X1', SZ_X)
    srd(52, 'xdst', 0, SZ_X)
    a('v_lshrrev_b32 v16, 3, v1')
    a('s_lshl_b32 s10, s5, 3')
    a('v_add_u32 v16, s10, v16')
    a('v_mul_u32_u24 v16, 896, v16')
    a('v_bfe_u32 v9, v1, 4, 1')
    a('s_and_b32 s10, s5, 1')
    a('s_lshl_b32 s10, s10, 1')
    a('v_or_b32 v9, s10, v9')
    a('v_bfe_u32 v10, v1, 1, 2')
    a('v_xor_b32 v9, v9, v10')
    a('v_lshlrev_b32 v9, 5, v9')
    a('v_and_b32 v10, 1, v1')
    a('v_lshlrev_b32 v10, 4, v10')
    a('v_add3_u32 v16, v16, v9, v10')
    a('s_lshl_b32 s10, s7, 7')
    a('v_add_u32 v16, s10, v16')
    a('s_lshl_b32 s10, s5, 2')
    a('v_add_u32 v17, s10, v3')
    a('v_and_b32 v10, 15, v17')
    a('v_xor_b32 v9, v2, v10')
    a('v_lshlrev_b32 v9, 4, v9')
    a('s_lshl_b32 s10, s6, 6')
    a('v_add_u32 v17, s10, v17')
    a('s_mov_b32 s10, %d' % (F * 2))
    a('v_mul_lo_u32 v17, v17, s10')
    a('v_add_u32 v17, v17, v9')
    a('s_lshl_b32 s12, s5, 10')
    def dmaW(kc):
        b = (kc & 3) * 16384 + 65536
        for i in range(2):
            a('s_add_u32 m0, s12, %d' % (b + i * 8192))
            a('s_mov_b32 s10, %d' % ((kc * 128 + i * 64) * 896))
            a('buffer_load_dwordx4 v16, s[40:43], s10 offen lds')
    def dmaA(kc):
        b = (kc & 3) * 16384
        for i in range(2):
            a('s_add_u32 m0, s12, %d' % (b + i * 8192))
            a('s_mov_b32 s10, %d' % (kc * 256 + i * 32 * F * 2))
            a('buffer_load_dwordx4 v17, s[44:47], s10 offen lds')
    dmaW(0); dmaW(1); dmaW(2)
    wait_dep(5, ['s6'], 16)
    stamp()
    dmaA(0); dmaA(1); dmaA(2)
    out_addrB(13)
    tr_bases64(65536, 18)
    a('s_lshr_b32 s10, s5, 1')
    a('s_lshl_b32 s10, s10, 12')
    a('v_lshlrev_b32 v24, 8, v2')
    a('v_add_u32 v24, s10, v24')
    a('v_xor_b32 v25, v3, v2')
    for t in range(4):
        a('v_xor_b32 v%d, %d, v25' % (26 + t, 4 * t))
        a('v_lshl_add_u32 v%d, v%d, 4, v24' % (26 + t, 26 + t))
    RES = 40
    for i in range(8): a('v_mov_b32 v%d, 0' % (ACC + i))
    BF = 160
    def reads(kc, t, slot):
        bo = (kc & 3) * 16384
        a('ds_read_b128 %s, v%d offset:%d' % (vr(BF + 4 * slot), 26 + t, bo))
        for T in range(2):
            for h in range(2):
                a('ds_read_b64_tr_b16 v[%d:%d], v%d offset:%d' % (FRG + 8 * slot + 4 * T + 2 * h, FRG + 8 * slot + 4 * T + 2 * h + 1, 18 + T, bo + (32 * t + 4 * h) * 128))
    def iteration(kc, ops, early):
        last = max(i for i, t_ in enumerate(ops) if t_ == ('c', kc))
        a('s_waitcnt vmcnt(%d)' % (len(ops) - 1 - last))
        a('s_barrier')
        reads(kc, 0, 0); reads(kc, 1, 1); reads(kc, 2, 2)
        if kc + 3 < NC:
            dmaW(kc + 3); dmaA(kc + 3); ops += [('c', kc + 3)] * 4
        if kc == NC - 3:
            a('buffer_load_dwordx2 v[%d:%d], v13, s[48:51], 0 offen' % (RES, RES + 1))
            a('buffer_load_dwordx2 v[%d:%d], v13, s[48:51], 0 offen offset:32' % (RES + 2, RES + 3))
            a('buffer_load_dwordx2 v[%d:%d], v13, s[56:59], 0 offen' % (RES + 4, RES + 5))
            a('buffer_load_dwordx2 v[%d:%d], v13, s[56:59], 0 offen offset:32' % (RES + 6, RES + 7))
            ops += [('r', 0)] * 4
        for t in range(4):
            if t == 0:
                a('s_waitcnt lgkmcnt(10)')
            elif t == 1:
                reads(kc, 3, 0); a('s_waitcnt lgkmcnt(10)')
            elif t == 2: a('s_waitcnt lgkmcnt(5)')
            else: a('s_waitcnt lgkmcnt(0)')
            sl = t % 3
            for T in range(2):
                a('v_mfma_f32_16x16x32_bf16 %s, %s, %s, %s' % (vr(ACC + 4 * T), vr(FRG + 8 * sl + 4 * T), vr(BF + 4 * sl), vr(ACC + 4 * T)))
        if early and kc in (11, 12, 13):
            sub = {11: [4, 5, 8], 12: [6, 7, 9], 13: [0, 1]}[kc]
            W_dma_generic(60 + 0, 3 * D * 2, D, 6, S1SEGS, S1_W, only=sub) if False else None
            W_dma_generic(84 if False else 44, 3 * D * 2, D, 6, S1SEGS, S1_W, only=sub)
            a('s_lshl_b32 s12, s5, 10')
            ops += [('w', kc)] * len(sub)
    ops = [('c', 0)] * 2 + [('c', 1)] * 2 + [('c', 2)] * 2 + [('c', 0)] * 2 + [('c', 1)] * 2 + [('c', 2)] * 2
    for kc in range(11):
        iteration(kc, ops, False)
    lno = newlbl('s6no'); ljn = newlbl('s6j')
    a('s_cmp_lg_u32 s64, 0')
    a('s_cbranch_scc1 %s' % lno)
    srd(44, 'wqkv', 0, D * 3 * D * 2)
    o2 = list(ops)
    for kc in range(11, NC): iteration(kc, o2, True)
    a('s_mov_b32 s75, 1')
    a('s_branch %s' % ljn)
    a.label(lno)
    o2 = list(ops)
    for kc in range(11, NC): iteration(kc, o2, False)
    a.label(ljn)
    stamp()
    T0 = MISC
    a('s_waitcnt vmcnt(0)')
    unpack4(RES, T0); unpack4(RES + 2, T0 + 4)
    for i in range(8): a('v_add_f32 v%d, v%d, v%d' % (ACC + i, ACC + i, T0 + i))
    unpack4(RES + 4, T0); unpack4(RES + 6, T0 + 4)
    for i in range(8): a('v_add_f32 v%d, v%d, v%d' % (ACC + i, ACC + i, T0 + i))
    for i in range(4):
        a('v_cvt_pk_bf16_f32 v%d, v%d, v%d' % (T0 + 8 + i, ACC + 2 * i, ACC + 2 * i + 1))
    st16_addr(14, 13)
    swap16(T0 + 8)
    a(('buffer_store_dwordx4 %s, v14, s[52:55], 0 offen' + CUR['sc']) % vr(T0 + 8))
    signal(6, ['s6'], 's7')
    lr = newlbl('s6r')
    a('s_cmp_eq_u32 s75, 0')
    a('s_cbranch_scc1 %s' % lr)
    W_dma_generic(44, 3 * D * 2, D, 6, S1SEGS, S1_W, only=[2, 3, 10])
    a.label(lr)
    stamp()

def build():
    a.raw('.p2align 8')
    a.raw('.globl %s' % KNAME)
    a.raw('.type %s,@function' % KNAME)
    a.raw('%s:' % KNAME)
    a('s_cmp_ge_u32 s2, 256')
    a('s_cbranch_scc1 L_end')
    a('s_load_dwordx16 s[16:31], s[0:1], 0x0')
    a('s_load_dwordx8 s[32:39], s[0:1], 0x40')
    a('''s_and_b32 s10, s2, 7
         s_lshr_b32 s11, s2, 3
         s_and_b32 s12, s11, 1
         s_lshl_b32 s12, s12, 3
         s_add_u32 s3, s10, s12
         s_lshr_b32 s4, s11, 1
         s_mul_i32 s12, s11, 37
         s_lshr_b32 s12, s12, 8
         s_mul_i32 s13, s12, 7
         s_sub_u32 s7, s11, s13
         s_lshr_b32 s13, s12, 1
         s_lshl_b32 s13, s13, 3
         s_add_u32 s13, s13, s10
         s_lshl_b32 s13, s13, 1
         s_and_b32 s6, s12, 1
         s_add_u32 s6, s6, s13
         s_cmp_lt_u32 s11, 28
         s_cselect_b32 s74, 1, 0
         v_and_b32 v1, 63, v0
         v_and_b32 v2, 15, v1
         v_lshrrev_b32 v3, 4, v1
         v_bfe_u32 v4, v1, 2, 2
         v_and_b32 v5, 3, v1
         v_lshrrev_b32 v6, 6, v0
         v_readfirstlane_b32 s5, v6
         s_mov_b32 s60, 0
         s_mov_b32 s61, 0xffff0000''')
    assert all((m * 37) >> 8 == m // 7 for m in range(32))
    m56, sh56 = magic_div(56, 448)
    for i in range(7):
        r = OFFS + i
        a('v_add_u32 v8, %d, v1' % (64 * i))
        a('v_mul_u32_u24 v9, %d, v8' % m56)
        a('v_lshrrev_b32 v9, %d, v9' % sh56)
        a('v_mul_u32_u24 v10, 56, v9')
        a('v_sub_u32 v8, v8, v10')
        a('v_lshrrev_b32 v10, 1, v9')
        a('v_xor_b32 v8, v8, v10')
        a('v_lshlrev_b32 v8, 4, v8')
        a('v_mul_u32_u24 v9, 896, v9')
        a('v_add_u32 v%d, v8, v9' % r)
    a('v_lshrrev_b32 v8, 1, v2')
    a('v_xor_b32 v8, v8, v3')
    a('v_mul_u32_u24 v9, 896, v2')
    a('v_lshl_add_u32 v%d, v8, 4, v9' % FAE)
    a('v_xor_b32 v8, 4, v8')
    a('v_lshl_add_u32 v%d, v8, 4, v9' % FAO)
    for i in range(4): a('v_mov_b32 v%d, 0x3f803f80' % (ONES + i))
    a('s_waitcnt lgkmcnt(0)')
    srd(76, 'dbg', 0, 256)
    srd(92, 'ws', FLAG_OFF, 16 * 4096)
    a('s_mov_b32 s90, 0'); a('s_mov_b32 s91, 0')
    a('s_or_b32 s10, s2, s5')
    a('s_cmp_lg_u32 s10, 0')
    a('s_cbranch_scc1 L_notag')
    a('s_memrealtime s[10:11]')
    a('s_waitcnt lgkmcnt(0)')
    a('s_or_b32 s10, s10, 1')
    a('v_mov_b32 v10, s10'); a('v_mov_b32 v11, s11'); a('v_mov_b32 v8, 0')
    a('s_mov_b64 exec, 1')
    a('buffer_store_dwordx2 v[10:11], v8, s[76:79], 0 offen sc1')
    a('s_mov_b64 exec, -1')
    a.label('L_notag')
    if STAMPS: srd(84, 'ws', 60 * MB, 4 * MB)
    a('s_mov_b32 s64, 0')
    a('s_mov_b32 s75, 0')
    a.flush_hazards(4)
    a.label('L_layer')
    a('s_lshl_b32 s10, s64, 25')
    a('s_add_u32 s66, s38, s10'); a('s_addc_u32 s67, s39, 0')
    a('s_add_u32 s10, s38, 0x%x' % WOFF['X2']); a('s_addc_u32 s11, s39, 0')
    a('s_cmp_eq_u32 s64, 0')
    a('s_cselect_b32 s68, s16, s10'); a('s_cselect_b32 s69, s17, s11')
    a('s_cselect_b32 s70, s10, s34'); a('s_cselect_b32 s71, s11, s35')
    a('s_mul_i32 s72, s64, %d' % CNT_PER_LAYER)
    nstamp[0] = 0
    stamp()
    stage_S1()
    stage_S2a()
    lB = newlbl('skipB'); lW = newlbl('warm')
    a('s_cmp_eq_u32 s74, 0')
    a('s_cbranch_scc1 %s' % lW)
    def pf_w1():
        srd(40, 'w1', 0, D * D * 2); W_dma64(40, R1, D)
    def pf_w2():
        srd(40, 'w2', 0, D * D * 2); W_dma64(40, R0, D)
    stage_small('wo', R0, R1, 16, pf_w1)
    stage_small('w1', R1, R0, 23, pf_w2)
    def pf_w3():
        srd(40, 'w3', 0, D * F * 2); W_dma_generic(40, F * 2, D, 7, [(0, 224, 14)], S5_W)
    stage_small('w2', R0, R1, 30, pf_w3)
    a('s_branch %s' % lB)
    a.label(lW)
    a('s_cmp_lg_u32 s64, 0')
    a('s_cbranch_scc1 %s' % lB)
    a('s_lshr_b32 s10, s2, 3')
    a('s_sub_u32 s10, s10, 28')
    a('s_mul_i32 s10, s10, %d' % (D * F * 2 // 4))
    a('v_lshlrev_b32 v8, 4, v0')
    a('v_add_u32 v8, s10, v8')
    for wname in ('w4',):
        srd(40, wname, 0, D * F * 2)
        for i in range(49):
            a('s_mov_b32 s10, %d' % (i * 8192))
            a('buffer_load_dwordx4 %s, v8, s[40:43], s10 offen' % vr(16 + 4 * (i % 16)))
            if i % 16 == 15: a('s_waitcnt vmcnt(8)')
        a('s_waitcnt vmcnt(0)')
    a.label(lB)
    stage_S5()
    lB2 = newlbl('skipB')
    a('s_cmp_eq_u32 s74, 0')
    a('s_cbranch_scc1 %s' % lB2)
    stage_S6()
    a.label(lB2)
    a('s_add_u32 s64, s64, 1')
    a('s_cmp_lt_u32 s64, 2')
    a.flush_hazards(13)
    a('s_cbranch_scc1 L_layer')
    a.label('L_abort')
    a.label('L_end')
    a('s_endpgm')
    hdr = '; @launch grid=(256,1,1) block=(512,1,1) lds=%d\n' % LDS_TOTAL
    txt = hdr + '.amdgcn_target "amdgcn-amd-amdhsa--gfx950"\n.text\n' + a.text()
    txt += '''.section .rodata,"a"
.p2align 6
.amdhsa_kernel %s
  .amdhsa_next_free_vgpr 256
  .amdhsa_next_free_sgpr 100
  .amdhsa_accum_offset 256
  .amdhsa_group_segment_fixed_size 0
  .amdhsa_kernarg_size 96
  .amdhsa_user_sgpr_count 2
  .amdhsa_user_sgpr_kernarg_segment_ptr 1
  .amdhsa_system_sgpr_workgroup_id_x 1
.end_amdhsa_kernel
''' % KNAME
    return txt

if __name__ == '__main__':
    out = sys.argv[1] if len(sys.argv) > 1 else 'pers.s'
    open(out, 'w').write(build())
    print('written', out, 'nops', a.nops_inserted)
```

```python
import sys, os, struct
sys.path.insert(0, 'gen')
from asmlib import Asm

S, D, H, DH, F = 2048, 448, 16, 28, 1792
MB = 1 << 20
WOFF = dict(KVP=0, PHIQ=2 * MB, O=6 * MB, XP=8 * MB, HH=10 * MB, X1=12 * MB, STATS=14 * MB, G=16 * MB, X2=24 * MB)
SZ_X = S * D * 2
SZ_G = S * F * 2
SZ_KVP = 16 * 16 * 8192
SZ_STATS = S * 8
P = dict(x=16, wqkv=18, wphi=20, wo=22, bx=24, w1=26, w2=28, w3=30, w4=32, out=34, dbg=36, ws=38, lws=66, xsrc=68, xdst=70)
LOG2E = 1.4426950408889634
STAMPS = int(os.environ.get('STAMPS', '0'))
FAST = int(os.environ.get('FAST', '0'))
CUR = {'sc': ' sc1'}
KNAME = 'interleave_layers__linear_kernel_hedgehog__mixer_s_mlp__prompt_kernel'

def f32hex(x):
    return '0x%08x' % struct.unpack('<I', struct.pack('<f', x))[0]
def vr(b, n=4):
    return 'v[%d:%d]' % (b, b + n - 1)

ACT = 16
WST = 72
FRG = 128
ACC = 184
MISC = 212
OFFS = 236
FAE = 243; FAO = 244
TMPA = 245
PHQ = 248
R0 = 0; R1 = 57344; R2 = 114688
LDS_TOTAL = 163840
S1_W = 65536; S1_WPHI = 151552; S1_ATR = 0
S1_PHIK = S1_ATR; S1_VV = S1_ATR + 16384
S2A_KV = 155648
CNT_PER_LAYER = 60

a = Asm()
nstamp = [0]
def stamp():
    if not STAMPS: return
    i = nstamp[0]
    a('s_waitcnt lgkmcnt(0)')
    a('s_memtime s[80:81]')
    a('s_waitcnt lgkmcnt(0)')
    a('v_mov_b32 v%d, s80' % TMPA)
    a('s_lshl_b32 s82, s2, 10')
    a('s_lshl_b32 s83, s64, 8')
    a('s_add_u32 s82, s82, s83')
    a('s_lshl_b32 s83, s5, 9')
    a('s_add_u32 s82, s82, s83')
    a('v_mov_b32 v%d, s82' % (TMPA + 1))
    a('s_cmp_gt_u32 s5, 1')
    a('s_cbranch_scc1 L_nost_%d' % i)
    a('s_mov_b64 exec, 1')
    a('buffer_store_dword v%d, v%d, s[84:87], 0 offen offset:%d' % (TMPA, TMPA + 1, 4 * (i % 64)))
    a('s_mov_b64 exec, -1')
    a.label('L_nost_%d' % i)
    nstamp[0] += 1

def srd(d, ptr, off, size):
    p = P[ptr]
    if off:
        a('s_add_u32 s%d, s%d, 0x%x' % (d, p, off))
        a('s_addc_u32 s%d, s%d, 0' % (d + 1, p + 1))
    else:
        a('s_mov_b32 s%d, s%d' % (d, p))
        a('s_mov_b32 s%d, s%d' % (d + 1, p + 1))
    a('s_mov_b32 s%d, 0x%x' % (d + 2, size))
    a('s_mov_b32 s%d, 0x00020000' % (d + 3))
def lsrd(d, name, size):
    srd(d, 'lws', WOFF[name], size)

def magic_div(d, maxv):
    for sh in range(8, 24):
        m = -(-(1 << sh) // d)
        if all((t * m) >> sh == t // d for t in range(maxv)) and m * maxv < (1 << 32) and m < (1 << 24):
            return m, sh
    raise ValueError

class DsBase:
    def __init__(self, reg, extra_regs):
        self.reg = reg; self.extra = list(extra_regs); self.made = {}
    def prep(self, maxoff):
        k = 1
        while maxoff >= k * 61440:
            r = self.extra[k - 1]
            a('v_add_u32 v%d, 0x%x, v%d' % (r, k * 61440, self.reg))
            self.made[k] = r
            k += 1
    def at(self, off):
        k = off // 61440
        r = self.reg if k == 0 else self.made[k]
        return 'v%d' % r, off - k * 61440

lblc = [0]
def newlbl(p):
    lblc[0] += 1
    return 'L_%s_%d' % (p, lblc[0])

FLAG_OFF = 56 * MB
def get_tag():
    l = newlbl('gt'); lp = newlbl('gtp')
    a('s_cmp_lg_u32 s5, 0')
    a('s_cbranch_scc1 %s' % l)
    a('s_cmp_lg_u32 s90, 0')
    a('s_cbranch_scc1 %s' % l)
    a('v_mov_b32 v8, 0')
    a('s_mov_b32 s15, 0')
    a.flush_hazards(4)
    a.label(lp)
    a('buffer_load_dwordx2 v[10:11], v8, s[76:79], 0 offen sc1')
    a('s_waitcnt vmcnt(0)')
    a('v_readfirstlane_b32 s90, v10')
    a('v_readfirstlane_b32 s91, v11')
    a('s_add_u32 s15, s15, 1')
    a('s_cmp_gt_u32 s15, 0x40000')
    a('s_cbranch_scc1 L_abort')
    a('s_cmp_lg_u32 s90, 0')
    a('s_cbranch_scc1 %s' % l)
    a('s_sleep 2')
    a('s_branch %s' % lp)
    a.label(l)

def flag_addr(stage, groups, slot_expr):
    pass

def signal(stage, groups, slot):
    a('s_waitcnt vmcnt(0) lgkmcnt(0)')
    a('s_barrier')
    l = newlbl('sig')
    a('s_cmp_lg_u32 s5, 0')
    a('s_cbranch_scc1 %s' % l)
    a('v_mov_b32 v8, %s' % groups[0])
    if len(groups) > 1:
        a('v_mov_b32 v9, %s' % groups[1])
        a('v_cmp_eq_u32 vcc, 1, v1')
        a('v_cndmask_b32 v8, v8, v9, vcc')
    a('s_lshl_b32 s10, s64, 3')
    a('s_add_u32 s10, s10, %d' % stage)
    a('s_lshl_b32 s10, s10, 12')
    a('s_lshl_b32 s11, %s, 3' % slot)
    a('s_add_u32 s10, s10, s11')
    a('v_lshlrev_b32 v8, 7, v8')
    a('v_add_u32 v8, s10, v8')
    a('v_mov_b32 v10, s90')
    a('v_mov_b32 v11, s91')
    a('s_mov_b64 exec, %d' % ((1 << len(groups)) - 1))
    a('buffer_store_dwordx2 v[10:11], v8, s[92:95], 0 offen' + CUR['sc'])
    a('s_mov_b64 exec, -1')
    a.label(l)

def wait_dep(stage, groups, nslots, prev_layer=False):
    l = newlbl('wd'); lp = newlbl('poll')
    a('s_cmp_lg_u32 s5, 0')
    a('s_cbranch_scc1 %s' % l)
    a('v_mov_b32 v8, %s' % groups[0])
    for i in range(1, len(groups)):
        a('v_mov_b32 v9, %s' % groups[i])
        a('v_cmp_eq_u32 vcc, %d, v3' % i)
        a('v_cndmask_b32 v8, v8, v9, vcc')
    a('s_lshl_b32 s10, s64, 3')
    a('s_add_u32 s10, s10, %d' % (stage - (8 if prev_layer else 0)))
    a('s_lshl_b32 s10, s10, 12')
    a('v_lshlrev_b32 v8, 7, v8')
    a('v_lshl_add_u32 v8, v2, 3, v8')
    a('v_add_u32 v8, s10, v8')
    msk = 0
    for i in range(len(groups)): msk |= ((1 << nslots) - 1) << (16 * i)
    a('s_mov_b32 exec_lo, 0x%x' % (msk & 0xffffffff))
    a('s_mov_b32 exec_hi, 0x%x' % (msk >> 32))
    a('s_mov_b32 s15, 0')
    a.flush_hazards(6)
    a.label(lp)
    a('buffer_load_dwordx2 v[10:11], v8, s[92:95], 0 offen sc1')
    a('s_waitcnt vmcnt(0)')
    a('v_cmp_ne_u64 vcc, s[90:91], v[10:11]')
    a('s_add_u32 s15, s15, 1')
    a('s_cmp_gt_u32 s15, 0x40000')
    a('s_cbranch_scc1 L_abort')
    a('s_cmp_eq_u64 vcc, 0')
    a.flush_hazards(3)
    a('s_cbranch_scc1 %s_done' % lp)
    a('s_sleep 1')
    a('s_branch %s' % lp)
    a.label('%s_done' % lp)
    a('s_mov_b64 exec, -1')
    a.label(l)
    a('s_barrier')

def w_stage_issue(srdn, wstride, K, NT, R, segs, tmp, dst=WST):
    CH = 2 * NT
    used = R * CH
    rounds = K // R
    m, sh = magic_div(CH, 512)
    t0, t1 = tmp, tmp + 1
    a('v_min_u32 v%d, %d, v0' % (t0, used - 1))
    a('v_mul_u32_u24 v%d, %d, v%d' % (t1, m, t0))
    a('v_lshrrev_b32 v%d, %d, v%d' % (t1, sh, t1))
    a('v_mul_u32_u24 v%d, %d, v%d' % (tmp + 2, CH, t1))
    a('v_sub_u32 v%d, v%d, v%d' % (t0, t0, tmp + 2))
    a('s_mov_b32 s10, %d' % wstride)
    a('v_mul_lo_u32 v%d, v%d, s10' % (tmp + 2, t1))
    if len(segs) == 1:
        imm, jmul, _ = segs[0]
        a('s_mul_i32 s10, s4, %d' % jmul)
        a('v_lshlrev_b32 v%d, 4, v%d' % (tmp + 3, t0))
        a('v_add3_u32 v%d, v%d, v%d, s10' % (tmp + 2, tmp + 2, tmp + 3))
    else:
        segstride = segs[1][0] - segs[0][0]
        jmul = segs[0][1]
        a('s_mul_i32 s10, s4, %d' % jmul)
        a('v_lshrrev_b32 v%d, 2, v%d' % (tmp + 3, t0))
        a('v_mul_u32_u24 v%d, %d, v%d' % (tmp + 3, segstride, tmp + 3))
        a('v_add3_u32 v%d, v%d, v%d, s10' % (tmp + 2, tmp + 2, tmp + 3))
        a('v_and_b32 v%d, 3, v%d' % (tmp + 3, t0))
        a('v_lshlrev_b32 v%d, 4, v%d' % (tmp + 3, tmp + 3))
        a('v_add_u32 v%d, v%d, v%d' % (tmp + 2, tmp + 2, tmp + 3))
    for i in range(rounds):
        a('s_mov_b32 s10, 0x%x' % (i * R * wstride))
        a('buffer_load_dwordx4 %s, v%d, s[%d:%d], s10 offen' % (vr(dst + 4 * i), tmp + 2, srdn, srdn + 3))
    RS = 32 * NT
    a('v_bfe_u32 v%d, v%d, 3, 1' % (tmp + 2, t1))
    a('v_lshrrev_b32 v%d, 1, v%d' % (tmp + 3, t0))
    if NT % 2:
        a('v_cmp_gt_u32 vcc, %d, v%d' % (NT - 1, tmp + 3))
        a('v_cndmask_b32 v%d, 0, v%d, vcc' % (tmp + 2, tmp + 2))
    a('v_xor_b32 v%d, v%d, v%d' % (tmp + 2, tmp + 2, tmp + 3))
    a('v_lshlrev_b32 v%d, 5, v%d' % (tmp + 2, tmp + 2))
    a('v_and_b32 v%d, 1, v%d' % (tmp + 3, t0))
    a('v_lshlrev_b32 v%d, 4, v%d' % (tmp + 3, tmp + 3))
    a('v_mul_u32_u24 v%d, %d, v%d' % (t1, RS, t1))
    a('v_add3_u32 v%d, v%d, v%d, v%d' % (t1, t1, tmp + 2, tmp + 3))
    return rounds

def w_stage_write(rounds, NT, R, ldsbase, addr_reg, extra, pending_after, src=WST):
    RS = 32 * NT
    if ldsbase:
        a('v_add_u32 v%d, 0x%x, v%d' % (addr_reg, ldsbase, addr_reg))
    db = DsBase(addr_reg, extra)
    db.prep((rounds - 1) * R * RS)
    for i in range(rounds):
        a('s_waitcnt vmcnt(%d)' % min(63, rounds - 1 - i + pending_after))
        r, o = db.at(i * R * RS)
        a('ds_write_b128 %s, %s offset:%d' % (r, vr(src + 4 * i), o))

def W_dma_generic(srdn, wstride, K, NT, segs, ldsbase, only=None):
    CH = 2 * NT
    NCH = K * CH
    ninstr = -(-NCH // 64)
    m, sh = magic_div(CH, ninstr * 64 + 512)
    if len(segs) == 1: a('s_mul_i32 s11, s4, %d' % segs[0][1])
    else: a('s_mul_i32 s11, s4, %d' % segs[0][1])
    a('s_lshl_b32 s12, s5, 10')
    a('s_add_u32 s12, s12, %d' % ldsbase)
    a('s_lshl_b32 s10, s5, 6')
    a('v_add_u32 v12, s10, v1')
    for i in range(-(-ninstr // 8)):
        if only is not None and i not in only: continue
        lsk = None
        if i * 8 + 7 >= ninstr:
            lsk = newlbl('wdg')
            a('s_cmp_ge_u32 s5, %d' % (ninstr - i * 8))
            a('s_cbranch_scc1 %s' % lsk)
        a('v_add_u32 v8, %d, v12' % (i * 512))
        a('v_mul_u32_u24 v9, %d, v8' % m)
        a('v_lshrrev_b32 v9, %d, v9' % sh)
        a('v_mul_u32_u24 v10, %d, v9' % CH)
        a('v_sub_u32 v8, v8, v10')
        a('v_bfe_u32 v10, v9, 3, 1')
        if NT % 2:
            a('v_lshlrev_b32 v10, 2, v10')
            a('v_xor_b32 v9, v9, v10')
        else:
            a('v_lshlrev_b32 v10, 1, v10')
            a('v_xor_b32 v8, v8, v10')
        a('s_mov_b32 s10, %d' % wstride)
        a('v_mul_lo_u32 v9, v9, s10')
        if len(segs) == 1:
            a('v_lshl_add_u32 v9, v8, 4, v9')
        else:
            segstride = segs[1][0] - segs[0][0]
            a('v_lshrrev_b32 v10, 2, v8')
            a('v_mul_u32_u24 v10, %d, v10' % segstride)
            a('v_and_b32 v8, 3, v8')
            a('v_lshlrev_b32 v8, 4, v8')
            a('v_add3_u32 v9, v9, v10, v8')
        a('s_add_u32 m0, s12, %d' % (i * 8192))
        a('buffer_load_dwordx4 v9, s[%d:%d], s11 offen lds' % (srdn, srdn + 3))
        if lsk: a.label(lsk)

def allreduce_g(x, t, op):
    a('v_mov_b32 v%d, v%d' % (t, x))
    a('v_permlane16_swap_b32 v%d, v%d' % (x, t))
    a('%s v%d, v%d, v%d' % (op, x, x, t))
    a('v_mov_b32 v%d, v%d' % (t, x))
    a('v_permlane32_swap_b32 v%d, v%d' % (x, t))
    a('%s v%d, v%d, v%d' % (op, x, x, t))

def layernorm(mode, tmp):
    s0, s1, q0, q1, one = tmp, tmp + 1, tmp + 2, tmp + 3, tmp + 4
    a('v_mov_b32 v%d, 0x3f803f80' % one)
    for r in (s0, s1, q0, q1): a('v_mov_b32 v%d, 0' % r)
    for i in range(56):
        x = ACT + i
        a('v_dot2_f32_bf16 v%d, v%d, v%d, v%d' % ((s0, s1)[i & 1], x, one, (s0, s1)[i & 1]))
        a('v_dot2_f32_bf16 v%d, v%d, v%d, v%d' % ((q0, q1)[i & 1], x, x, (q0, q1)[i & 1]))
    a('v_add_f32 v%d, v%d, v%d' % (s0, s0, s1))
    a('v_add_f32 v%d, v%d, v%d' % (q0, q0, q1))
    allreduce_g(s0, tmp + 5, 'v_add_f32')
    allreduce_g(q0, tmp + 5, 'v_add_f32')
    a('v_mul_f32 v%d, %s, v%d' % (s0, f32hex(1.0 / D), s0))
    a('v_mul_f32 v%d, %s, v%d' % (q0, f32hex(1.0 / D), q0))
    a('v_fma_f32 v%d, -v%d, v%d, v%d' % (q0, s0, s0, q0))
    a('v_max_f32 v%d, 0, v%d' % (q0, q0))
    a('v_add_f32 v%d, %s, v%d' % (s1, f32hex(1e-5), q0))
    a('v_rsq_f32 v%d, v%d' % (s1, s1))
    sc = s1
    if mode == 2:
        a('v_mul_f32 v%d, v%d, v%d' % (q1, s1, s1))
        a('v_mul_f32 v%d, v%d, v%d' % (q1, q1, q0))
        a('v_add_f32 v%d, %s, v%d' % (q1, f32hex(1e-5), q1))
        a('v_rsq_f32 v%d, v%d' % (q1, q1))
        a('v_mul_f32 v%d, v%d, v%d' % (q1, q1, s1))
        sc = q1
    p = tmp + 6
    assert p % 2 == 0
    a('v_mov_b32 v%d, v%d' % (p, sc)); a('v_mov_b32 v%d, v%d' % (p + 1, sc))
    a('v_mul_f32 v%d, v%d, v%d' % (p + 2, s0, sc)); a('v_sub_f32 v%d, 0, v%d' % (p + 2, p + 2)); a('v_mov_b32 v%d, v%d' % (p + 3, p + 2))
    u = tmp + 10
    for i in range(56):
        x = ACT + i
        uu = u + 2 * (i & 1)
        a('v_lshlrev_b32 v%d, 16, v%d' % (uu, x))
        a('v_and_b32 v%d, 0xffff0000, v%d' % (uu + 1, x))
        a('v_pk_fma_f32 v[%d:%d], v[%d:%d], v[%d:%d], v[%d:%d]' % (uu, uu + 1, uu, uu + 1, p, p + 1, p + 2, p + 3))
        a('v_cvt_pk_bf16_f32 v%d, v%d, v%d' % (x, uu, uu + 1))

CS = 163328
ONES = 232
def ln_stats(mode, tmp):
    s0, s1, q0, q1 = tmp, tmp + 1, tmp + 2, tmp + 3
    for r in (s0, s1, q0, q1): a('v_mov_b32 v%d, 0' % r)
    for i in range(56):
        x = ACT + i
        a('v_dot2_f32_bf16 v%d, v%d, v%d, v%d' % ((s0, s1)[i & 1], x, ONES, (s0, s1)[i & 1]))
        a('v_dot2_f32_bf16 v%d, v%d, v%d, v%d' % ((q0, q1)[i & 1], x, x, (q0, q1)[i & 1]))
    a('v_add_f32 v%d, v%d, v%d' % (s0, s0, s1))
    a('v_add_f32 v%d, v%d, v%d' % (q0, q0, q1))
    allreduce_g(s0, tmp + 5, 'v_add_f32')
    allreduce_g(q0, tmp + 5, 'v_add_f32')
    a('v_mul_f32 v%d, %s, v%d' % (s0, f32hex(1.0 / D), s0))
    a('v_mul_f32 v%d, %s, v%d' % (q0, f32hex(1.0 / D), q0))
    a('v_fma_f32 v%d, -v%d, v%d, v%d' % (q0, s0, s0, q0))
    a('v_max_f32 v%d, 0, v%d' % (q0, q0))
    a('v_add_f32 v%d, %s, v%d' % (s1, f32hex(1e-5), q0))
    a('v_rsq_f32 v%d, v%d' % (s1, s1))
    if mode == 2:
        a('v_mul_f32 v%d, v%d, v%d' % (q1, s1, s1))
        a('v_mul_f32 v%d, v%d, v%d' % (q1, q1, q0))
        a('v_add_f32 v%d, %s, v%d' % (q1, f32hex(1e-5), q1))
        a('v_rsq_f32 v%d, v%d' % (q1, q1))
        a('v_mul_f32 v%d, v%d, v%d' % (q0, q1, s1))
    else:
        a('v_mov_b32 v%d, v%d' % (q0, s1))
    a('v_mul_f32 v%d, v%d, v%d' % (q1, s0, q0))
    a('v_sub_f32 v%d, 0, v%d' % (q1, q1))

def colsum_prepass(NT, wbase, typeB):
    RS = 128 if typeB else 32 * NT
    l = newlbl('cs')
    a('s_sub_u32 s10, s5, 1')
    a('s_cmp_ge_u32 s10, %d' % NT)
    a('s_cbranch_scc1 %s' % l)
    a('v_lshl_add_u32 v8, v3, 3, v4')
    a('v_mul_u32_u24 v8, %d, v8' % RS)
    a('v_lshl_add_u32 v8, v5, 3, v8')
    if typeB:
        a('v_lshrrev_b32 v9, 1, v4')
        a('v_and_b32 v10, 1, v3')
        a('v_lshl_or_b32 v9, v10, 1, v9')
    else:
        a('v_and_b32 v9, 1, v3')
    odd = (not typeB) and NT % 2
    if odd:
        a('v_mul_u32_u24 v10, %d, v9' % (4 * RS))
        a('s_lshl_b32 s11, s10, 5')
        a('v_add_u32 v8, s11, v8')
        a('v_add_u32 v8, %d, v8' % wbase)
        a('v_sub_u32 v11, v8, v10')
        a('v_add_u32 v11, %d, v11' % (4 * RS))
        a('v_add_u32 v8, v8, v10')
        a('v_add_u32 v9, 61440, v8')
        a('v_add_u32 v10, 61440, v11')
    else:
        a('v_xor_b32 v9, s10, v9')
        a('v_lshl_add_u32 v8, v9, 5, v8')
        a('v_add_u32 v8, %d, v8' % wbase)
        a('v_add_u32 v9, 61440, v8')
    for i in range(4): a('v_mov_b32 v%d, 0' % (12 + i))
    B0 = FRG
    for t in range(14):
        for h in range(2):
            off = (32 * t + (0 if odd else 4 * h)) * RS
            lo, hi = (8, 9) if (not odd or h == 0) else (11, 10)
            if off >= 61440: a('ds_read_b64_tr_b16 v[%d:%d], v%d offset:%d' % (B0 + 4 * t + 2 * h, B0 + 4 * t + 2 * h + 1, hi, off - 61440))
            else: a('ds_read_b64_tr_b16 v[%d:%d], v%d offset:%d' % (B0 + 4 * t + 2 * h, B0 + 4 * t + 2 * h + 1, lo, off))
        if t == 6 or t == 13:
            a('s_waitcnt lgkmcnt(0)')
            for tt in range(t - 6, t + 1):
                a('v_mfma_f32_16x16x32_bf16 v[12:15], %s, %s, v[12:15]' % (vr(B0 + 4 * tt), vr(ONES)))
    a('s_lshl_b32 s10, s10, 6')
    a('v_lshlrev_b32 v8, 4, v3')
    a('v_add_u32 v8, s10, v8')
    a('v_add_u32 v8, %d, v8' % CS)
    a('s_mov_b32 exec_lo, 0x00010001'); a('s_mov_b32 exec_hi, 0x00010001')
    a('ds_write_b128 v8, v[12:15]')
    a('s_mov_b64 exec, -1')
    a('s_waitcnt lgkmcnt(0)')
    a.label(l)

def cs_read(tiles, dst, tile0_sgpr=None):
    a('v_lshlrev_b32 v9, 4, v3')
    if tile0_sgpr:
        a('s_lshl_b32 s10, %s, 7' % tile0_sgpr)
        a('v_add_u32 v9, s10, v9')
    a('v_add_u32 v9, %d, v9' % CS)
    for i, T in enumerate(tiles):
        a('ds_read_b128 %s, v9 offset:%d' % (vr(dst + 4 * i), 64 * T))

def ln_apply(acc, n, cs, st):
    for i in range(n):
        a('v_mul_f32 v%d, v%d, v%d' % (acc + i, acc + i, st + 2))
        a('v_fmac_f32 v%d, v%d, v%d' % (acc + i, cs + i, st + 3))

def gemm_setup_addr(NT, ldsbase, tmp, extra_e, extra_o, K, plain=None):
    RS = 32 * NT
    a('v_lshl_add_u32 v%d, v3, 3, v4' % tmp)
    a('v_mul_u32_u24 v%d, %d, v%d' % (tmp, RS, tmp))
    a('v_lshl_add_u32 v%d, v5, 3, v%d' % (tmp, tmp))
    if ldsbase: a('v_add_u32 v%d, 0x%x, v%d' % (tmp, ldsbase, tmp))
    a('v_and_b32 v%d, 1, v3' % (tmp + 1))
    if NT % 2:
        a('v_mul_u32_u24 v%d, %d, v%d' % (tmp + 1, 4 * RS, tmp + 1))
        a('v_sub_u32 v%d, v%d, v%d' % (tmp + 2, tmp, tmp + 1))
        a('v_add_u32 v%d, %d, v%d' % (tmp + 2, 4 * RS, tmp + 2))
        a('v_add_u32 v%d, v%d, v%d' % (tmp, tmp, tmp + 1))
        a('v_mov_b32 v%d, v%d' % (tmp + 1, tmp + 2))
    else:
        a('v_lshlrev_b32 v%d, 5, v%d' % (tmp + 1, tmp + 1))
        a('v_sub_u32 v%d, v%d, v%d' % (tmp + 2, tmp, tmp + 1))
        a('v_add_u32 v%d, v%d, v%d' % (tmp, tmp, tmp + 1))
        a('v_mov_b32 v%d, v%d' % (tmp + 1, tmp + 2))
    de = DsBase(tmp, extra_e); do = DsBase(tmp + 1, extra_o)
    de.prep(K * RS); do.prep(K * RS)
    return de, do

def gemm_reads(de, do, NT, t, fr):
    RS = 32 * NT
    for T in range(NT):
        for h in range(2):
            if NT % 2:
                b = de if h == 0 else do
                r, o = b.at(32 * t * RS + 32 * T)
            else:
                b = de if T % 2 == 0 else do
                r, o = b.at((32 * t + 4 * h) * RS + 32 * T)
            a('ds_read_b64_tr_b16 v[%d:%d], %s offset:%d' % (fr + 4 * T + 2 * h, fr + 4 * T + 2 * h + 1, r, o))

def gemm_loop(de, do, NT, steps, acc=ACC, frg=FRG):
    fsz = 4 * NT
    for i in range(4 * NT): a('v_mov_b32 v%d, 0' % (acc + i))
    gemm_reads(de, do, NT, 0, frg)
    for t in range(steps):
        cur = frg + fsz * (t & 1); nxt = frg + fsz * ((t + 1) & 1)
        if t + 1 < steps:
            gemm_reads(de, do, NT, t + 1, nxt)
            a('s_waitcnt lgkmcnt(%d)' % min(15, 2 * NT))
        else:
            a('s_waitcnt lgkmcnt(0)')
        for T in range(NT):
            a('v_mfma_f32_16x16x32_bf16 %s, %s, %s, %s' % (vr(acc + 4 * T), vr(cur + 4 * T), vr(ACT + 4 * t), vr(acc + 4 * T)))

def gelu(x, t):
    ca = -2 * LOG2E * 0.7978845608028654
    cb = ca * 0.044715
    a('v_mul_f32 v%d, v%d, v%d' % (t, x, x))
    a('v_mov_b32 v%d, %s' % (t + 1, f32hex(ca)))
    a('v_fmac_f32 v%d, %s, v%d' % (t + 1, f32hex(cb), t))
    a('v_mul_f32 v%d, v%d, v%d' % (t, t + 1, x))
    a('v_exp_f32 v%d, v%d' % (t, t))
    a('v_add_f32 v%d, 1.0, v%d' % (t, t))
    a('v_rcp_f32 v%d, v%d' % (t, t))
    a('v_mul_f32 v%d, v%d, v%d' % (x, x, t))

def unpack4(src, dst):
    a('v_lshlrev_b32 v%d, 16, v%d' % (dst, src))
    a('v_and_b32 v%d, 0xffff0000, v%d' % (dst + 1, src))
    a('v_lshlrev_b32 v%d, 16, v%d' % (dst + 2, src + 1))
    a('v_and_b32 v%d, 0xffff0000, v%d' % (dst + 3, src + 1))

def typeA_rows():
    a('s_lshl_b32 s8, s3, 7')
    a('s_lshl_b32 s9, s5, 4')
    a('s_add_u32 s8, s8, s9')
    a('v_add_u32 v7, s8, v2')

def A_regs_path(srdn, atr, issue_only=False):
    a('s_mul_i32 s10, s8, 896')
    a('v_lshlrev_b32 v8, 4, v1')
    a('v_add_u32 v8, s10, v8')
    for i in range(14):
        a('s_mov_b32 s10, %d' % (i * 1024))
        a('buffer_load_dwordx4 %s, v8, s[%d:%d], s10 offen' % (vr(WST + 4 * i), srdn, srdn + 3))
    if issue_only: return
    A_regs_consume(atr)

def A_regs_consume(atr):
    a('s_mul_i32 s11, s5, 7168')
    a('s_add_u32 s11, s11, %d' % atr)
    a('v_and_b32 v9, 8, v2')
    a('v_mul_u32_u24 v9, 896, v9')
    a('v_sub_u32 v10, v%d, v9' % FAE)
    a('v_sub_u32 v11, v%d, v9' % FAO)
    a('v_add_u32 v10, s11, v10')
    a('v_add_u32 v11, s11, v11')
    for ph in range(2):
        for i in range(7):
            if ph == 0:
                a('v_add_u32 v%d, s11, v%d' % (MISC + i, OFFS + i))
            else:
                a('v_xor_b32 v%d, 64, v%d' % (MISC + i, OFFS + i))
                a('v_add_u32 v%d, s11, v%d' % (MISC + i, MISC + i))
        for i in range(7):
            a('s_waitcnt vmcnt(%d)' % (13 - (7 * ph + i)))
            a('ds_write_b128 v%d, %s' % (MISC + i, vr(WST + 4 * (7 * ph + i))))
        a('s_waitcnt lgkmcnt(0)')
        if ph == 0:
            a('s_mov_b32 exec_lo, 0x00ff00ff'); a('s_mov_b32 exec_hi, 0x00ff00ff')
        else:
            a('s_mov_b32 exec_lo, 0xff00ff00'); a('s_mov_b32 exec_hi, 0xff00ff00')
        for t in range(14):
            a('ds_read_b128 %s, v%d offset:%d' % (vr(ACT + 4 * t), 10 + (t & 1), (t >> 1) * 128))
        a('s_waitcnt lgkmcnt(0)')
        a('s_mov_b64 exec, -1')

def typeB_rows():
    a('s_lshl_b32 s8, s6, 6')
    a('s_lshr_b32 s9, s5, 1')
    a('s_lshl_b32 s9, s9, 4')
    a('s_add_u32 s8, s8, s9')
    a('v_add_u32 v7, s8, v2')
    a('s_and_b32 s13, s5, 1')

def A_dma_addr(shifted=False):
    a('s_lshl_b32 s10, s6, 6')
    a('s_lshl_b32 s11, s5, 3')
    a('s_add_u32 s10, s10, s11')
    a('s_mul_i32 s10, s10, 896')
    a('s_and_b32 s11, s5, 1')
    a('s_lshl_b32 s11, s11, 6')
    for i in range(7):
        r = MISC + i
        a('v_xor_b32 v%d, s11, v%d' % (r, OFFS + i))
        if shifted:
            m56_, sh56_ = magic_div(56, 448)
            m14_, sh14_ = magic_div(14, 64)
            a('v_lshrrev_b32 v%d, 4, v%d' % (MISC + 11, r))
            a('v_mul_u32_u24 v%d, %d, v%d' % (MISC + 8, m56_, MISC + 11))
            a('v_lshrrev_b32 v%d, %d, v%d' % (MISC + 8, sh56_, MISC + 8))
            a('v_mul_u32_u24 v%d, 56, v%d' % (MISC + 8, MISC + 8))
            a('v_sub_u32 v%d, v%d, v%d' % (MISC + 8, MISC + 11, MISC + 8))
            a('v_mul_u32_u24 v%d, %d, v%d' % (MISC + 8, m14_, MISC + 8))
            a('v_lshrrev_b32 v%d, %d, v%d' % (MISC + 8, sh14_, MISC + 8))
            a('v_lshrrev_b32 v%d, 1, v%d' % (MISC + 9, MISC + 8))
            a('v_add_u32 v%d, 1, v%d' % (MISC + 9, MISC + 9))
            a('v_mul_u32_u24 v%d, 896, v%d' % (MISC + 9, MISC + 9))
            a('v_and_b32 v%d, 1, v%d' % (MISC + 8, MISC + 8))
            a('v_cmp_eq_u32 vcc, 1, v%d' % (MISC + 8))
            a('v_sub_u32 v%d, 0, v%d' % (MISC + 10, MISC + 9))
            a('v_cndmask_b32 v%d, v%d, v%d, vcc' % (MISC + 9, MISC + 10, MISC + 9))
            a('v_add_u32 v%d, v%d, v%d' % (r, r, MISC + 9))
        a('v_add_u32 v%d, s10, v%d' % (r, r))

def A_dma_issue(srdn, areg):
    a('s_mul_i32 s12, s5, 7168')
    a('s_add_u32 s12, s12, %d' % areg)
    for i in range(7):
        a('s_add_u32 m0, s12, %d' % (i * 1024))
        a('buffer_load_dwordx4 v%d, s[%d:%d], 0 offen lds' % (MISC + i, srdn, srdn + 3))

def A_frag_read(areg):
    a('s_lshr_b32 s10, s5, 1')
    a('s_mul_i32 s10, s10, 14336')
    a('s_add_u32 s10, s10, %d' % areg)
    a('v_add_u32 v10, s10, v%d' % FAE)
    a('v_add_u32 v11, s10, v%d' % FAO)
    for t in range(14):
        a('ds_read_b128 %s, v%d offset:%d' % (vr(ACT + 4 * t), 10 + (t & 1), (t >> 1) * 128))

def W_dma64(srdn, wreg, K, krow0=0, wstride=896):
    a('v_lshrrev_b32 v8, 3, v1')
    a('s_lshl_b32 s10, s5, 3')
    a('v_add_u32 v8, s10, v8')
    a('s_mov_b32 s10, %d' % wstride)
    a('v_mul_lo_u32 v8, v8, s10')
    a('v_bfe_u32 v9, v1, 4, 1')
    a('s_and_b32 s10, s5, 1')
    a('s_lshl_b32 s10, s10, 1')
    a('v_or_b32 v9, s10, v9')
    a('v_bfe_u32 v10, v1, 1, 2')
    a('v_xor_b32 v9, v9, v10')
    a('v_lshlrev_b32 v9, 5, v9')
    a('v_and_b32 v10, 1, v1')
    a('v_lshlrev_b32 v10, 4, v10')
    a('v_add3_u32 v8, v8, v9, v10')
    a('s_lshl_b32 s10, s7, 7')
    a('s_add_u32 s10, s10, %d' % (krow0 * wstride))
    a('v_add_u32 v8, s10, v8')
    a('s_lshl_b32 s12, s5, 10')
    a('s_add_u32 s12, s12, %d' % wreg)
    for i in range(K // 64):
        a('s_add_u32 m0, s12, %d' % (i * 8192))
        a('s_mov_b32 s10, %d' % (i * 64 * wstride))
        a('buffer_load_dwordx4 v8, s[%d:%d], s10 offen lds' % (srdn, srdn + 3))

def tr_bases64(wreg, r0):
    a('v_lshl_add_u32 v%d, v3, 3, v4' % r0)
    a('v_lshlrev_b32 v%d, 7, v%d' % (r0, r0))
    a('v_lshl_add_u32 v%d, v5, 3, v%d' % (r0, r0))
    a('v_add_u32 v%d, %d, v%d' % (r0, wreg, r0))
    a('v_lshrrev_b32 v%d, 1, v4' % (r0 + 2))
    a('v_and_b32 v%d, 1, v3' % (r0 + 3))
    a('v_lshl_or_b32 v%d, v%d, 1, v%d' % (r0 + 2, r0 + 3, r0 + 2))
    a('s_lshl_b32 s10, s13, 1')
    a('v_xor_b32 v%d, s10, v%d' % (r0 + 3, r0 + 2))
    a('v_lshl_add_u32 v%d, v%d, 5, v%d' % (r0 + 1, r0 + 3, r0))
    a('v_xor_b32 v%d, 1, v%d' % (r0 + 3, r0 + 3))
    a('v_lshl_add_u32 v%d, v%d, 5, v%d' % (r0 + 3, r0 + 3, r0))
    a('v_mov_b32 v%d, v%d' % (r0, r0 + 1))
    a('v_mov_b32 v%d, v%d' % (r0 + 1, r0 + 3))

def gemm64(rb, steps=14):
    def reads(t, fr):
        for T in range(2):
            for h in range(2):
                a('ds_read_b64_tr_b16 v[%d:%d], v%d offset:%d' % (fr + 4 * T + 2 * h, fr + 4 * T + 2 * h + 1, rb + T, (32 * t + 4 * h) * 128))
    for i in range(8): a('v_mov_b32 v%d, 0' % (ACC + i))
    reads(0, FRG); reads(1, FRG + 8)
    for t in range(steps):
        cur = FRG + 8 * (t % 3)
        if t + 2 < steps:
            reads(t + 2, FRG + 8 * ((t + 2) % 3))
            a('s_waitcnt lgkmcnt(8)')
        elif t + 1 < steps:
            a('s_waitcnt lgkmcnt(4)')
        else:
            a('s_waitcnt lgkmcnt(0)')
        for T in range(2):
            a('v_mfma_f32_16x16x32_bf16 %s, %s, %s, %s' % (vr(ACC + 4 * T), vr(cur + 4 * T), vr(ACT + 4 * t), vr(ACC + 4 * T)))

def swap16(pk):
    a('v_permlane16_swap_b32 v%d, v%d' % (pk, pk + 2))
    a('v_permlane16_swap_b32 v%d, v%d' % (pk + 1, pk + 3))

def st16_addr(dst, src):
    a('v_lshlrev_b32 v%d, 3, v3' % dst)
    a('v_sub_u32 v%d, v%d, v%d' % (dst, src, dst))
    a('v_and_b32 v%d, 1, v3' % (TMPA))
    a('v_lshl_add_u32 v%d, v%d, 5, v%d' % (dst, TMPA, dst))
    a('v_lshrrev_b32 v%d, 1, v3' % (TMPA))
    a('v_lshl_add_u32 v%d, v%d, 4, v%d' % (dst, TMPA, dst))

def out_addrB(reg):
    a('s_mov_b32 s10, 896')
    a('v_mul_lo_u32 v%d, v7, s10' % reg)
    a('s_lshl_b32 s10, s7, 7')
    a('s_lshl_b32 s11, s13, 6')
    a('s_add_u32 s10, s10, s11')
    a('v_lshlrev_b32 v%d, 3, v3' % (reg + 1))
    a('v_add3_u32 v%d, v%d, v%d, s10' % (reg, reg, reg + 1))

def softmax_pair(p, outp, tmp):
    mx, mn, t, sp, sm = tmp, tmp + 1, tmp + 2, tmp + 3, tmp + 4
    em = tmp + 6
    for i in range(4):
        a('v_cndmask_b32 v%d, v%d, v%d, s[60:61]' % (p + 4 + i, p + 4 + i, p))
    a('v_max3_f32 v%d, v%d, v%d, v%d' % (mx, p, p + 1, p + 2))
    a('v_max3_f32 v%d, v%d, v%d, v%d' % (mx, mx, p + 3, p + 4))
    a('v_max3_f32 v%d, v%d, v%d, v%d' % (mx, mx, p + 5, p + 6))
    a('v_max_f32 v%d, v%d, v%d' % (mx, mx, p + 7))
    a('v_min3_f32 v%d, v%d, v%d, v%d' % (mn, p, p + 1, p + 2))
    a('v_min3_f32 v%d, v%d, v%d, v%d' % (mn, mn, p + 3, p + 4))
    a('v_min3_f32 v%d, v%d, v%d, v%d' % (mn, mn, p + 5, p + 6))
    a('v_min_f32 v%d, v%d, v%d' % (mn, mn, p + 7))
    allreduce_g(mx, t, 'v_max_f32')
    allreduce_g(mn, t, 'v_min_f32')
    a('v_mov_b32 v%d, %s' % (t, f32hex(LOG2E)))
    for i in range(8):
        a('v_sub_f32 v%d, v%d, v%d' % (em + i, mn, p + i))
        a('v_sub_f32 v%d, v%d, v%d' % (p + i, p + i, mx))
        a('v_mul_f32 v%d, v%d, v%d' % (em + i, em + i, t))
        a('v_mul_f32 v%d, v%d, v%d' % (p + i, p + i, t))
        a('v_exp_f32 v%d, v%d' % (em + i, em + i))
        a('v_exp_f32 v%d, v%d' % (p + i, p + i))
    for i in range(4, 8):
        a('v_cndmask_b32 v%d, v%d, 0, s[60:61]' % (p + i, p + i))
        a('v_cndmask_b32 v%d, v%d, 0, s[60:61]' % (em + i, em + i))
    a('v_add_f32 v%d, v%d, v%d' % (sp, p, p + 1)); a('v_add_f32 v%d, v%d, v%d' % (sm, em, em + 1))
    for i in range(2, 8):
        a('v_add_f32 v%d, v%d, v%d' % (sp, sp, p + i)); a('v_add_f32 v%d, v%d, v%d' % (sm, sm, em + i))
    allreduce_g(sp, t, 'v_add_f32')
    allreduce_g(sm, t, 'v_add_f32')
    a('v_rcp_f32 v%d, v%d' % (sp, sp)); a('v_rcp_f32 v%d, v%d' % (sm, sm))
    for i in range(8):
        a('v_mul_f32 v%d, v%d, v%d' % (p + i, p + i, sp))
        a('v_mul_f32 v%d, v%d, v%d' % (em + i, em + i, sm))
    for i in range(4):
        a('v_cvt_pk_bf16_f32 v%d, v%d, v%d' % (outp + i, p + 2 * i, p + 2 * i + 1))
        a('v_cvt_pk_bf16_f32 v%d, v%d, v%d' % (outp + 4 + i, em + 2 * i, em + 2 * i + 1))

def set_target(n):
    a('s_add_u32 s14, s72, %d' % n)

S1SEGS = [(0, 56, 4), (896, 56, 4), (1792, 56, 4)]
def stage_S1():
    CUR['sc'] = ' sc1'
    NT = 6
    typeA_rows()
    srd(40, 'wqkv', 0, D * 3 * D * 2)
    srd(44, 'xsrc', 0, SZ_X)
    srd(48, 'wphi', 0, H * DH * DH * 2)
    lsrd(52, 'KVP', SZ_KVP)
    a('v_and_b32 v8, 255, v0')
    a('v_lshrrev_b32 v9, 3, v8')
    a('v_and_b32 v10, 7, v8')
    a('v_mul_u32_u24 v11, 56, v9')
    a('v_lshl_add_u32 v11, v10, 3, v11')
    a('s_mul_i32 s10, s4, 1568')
    a('v_add_u32 v11, s10, v11')
    a('v_cmp_gt_u32 vcc, 28, v9')
    a('v_cmp_gt_u32 s[62:63], 7, v10')
    a('s_and_b64 vcc, vcc, s[62:63]')
    a('v_mov_b32 v12, 0x7fffffff')
    a('v_cndmask_b32 v11, v12, v11, vcc')
    a('buffer_load_dwordx2 v[%d:%d], v11, s[48:51], 0 offen' % (MISC + 4, MISC + 5))
    a('v_lshlrev_b32 v%d, 3, v8' % (MISC + 6))
    lw = newlbl('s1w')
    a('s_cmp_lg_u32 s75, 0')
    a('s_cbranch_scc1 %s' % lw)
    W_dma_generic(40, 3 * D * 2, D, NT, S1SEGS, S1_W)
    a.label(lw)
    a('s_mov_b32 s75, 0')
    la = newlbl('s1a')
    a('s_cmp_lg_u32 s64, 0')
    a('s_cbranch_scc1 %s' % la)
    A_regs_path(44, S1_ATR, issue_only=True)
    a('s_waitcnt vmcnt(14)')
    lb_ = newlbl('s1b')
    a('s_branch %s' % lb_)
    a.label(la)
    a('s_waitcnt vmcnt(0)')
    a.label(lb_)
    a('v_add_u32 v%d, 0x%x, v%d' % (MISC + 6, S1_WPHI, MISC + 6))
    a('ds_write_b64 v%d, v[%d:%d]' % (MISC + 6, MISC + 4, MISC + 5))
    a('s_waitcnt lgkmcnt(0)')
    a('s_barrier')
    stamp()
    colsum_prepass(NT, S1_W, False)
    lz = newlbl('zi')
    a('s_or_b32 s10, s64, s5')
    a('s_cmp_lg_u32 s10, 0')
    a('s_cbranch_scc1 %s' % lz)
    srd(56, 'ws', 0, 64 * MB)
    a('s_lshl_b32 s10, s4, 13'); a('s_lshl_b32 s11, s3, 9'); a('s_add_u32 s10, s10, s11')
    a('v_lshrrev_b32 v8, 5, v1'); a('v_lshlrev_b32 v8, 25, v8')
    a('v_and_b32 v9, 31, v1'); a('v_lshl_add_u32 v8, v9, 4, v8')
    a('v_add_u32 v8, s10, v8')
    for i in range(4): a('v_mov_b32 v%d, 0' % (12 + i))
    a('buffer_store_dwordx4 v[12:15], v8, s[56:59], 0 offen sc1')
    a('s_waitcnt vmcnt(0)')
    a.label(lz)
    lskip = newlbl('s1nodep'); lj = newlbl('s1j')
    a('s_cmp_eq_u32 s64, 0')
    a('s_cbranch_scc1 %s' % lskip)
    a('s_lshl_b32 s62, s3, 1'); a('s_add_u32 s63, s62, 1')
    wait_dep(6, ['s62', 's63'], 7, prev_layer=True)
    A_regs_path(44, S1_ATR, issue_only=True)
    a('s_branch %s' % lj)
    a.label(lskip)
    a('s_barrier')
    a.label(lj)
    stamp()
    A_regs_consume(S1_ATR)
    lz2 = newlbl('zf')
    a('s_or_b32 s10, s64, s5')
    a('s_cmp_lg_u32 s10, 0')
    a('s_cbranch_scc1 %s' % lz2)
    get_tag()
    a('s_lshl_b32 s10, s4, 7'); a('s_lshl_b32 s11, s3, 3'); a('s_add_u32 s10, s10, s11'); a('s_add_u32 s10, s10, %d' % (7 * 4096))
    a('v_mov_b32 v8, s10'); a('v_mov_b32 v10, s90'); a('v_mov_b32 v11, s91')
    a('s_mov_b64 exec, 1')
    a('buffer_store_dwordx2 v[10:11], v8, s[92:95], 0 offen sc1')
    a('s_mov_b64 exec, -1')
    a.label(lz2)
    stamp()
    de, do = gemm_setup_addr(NT, S1_W, 10, [MISC], [MISC + 1], D)
    ST = MISC + 4
    ln_stats(1, ST)
    stamp()
    gemm_loop(de, do, NT, 14)
    cs_read(range(6), WST)
    a('s_waitcnt lgkmcnt(0)')
    ln_apply(ACC, 24, WST, ST)
    stamp()
    WA = 16; QB = 24; KB = 28; PQ = 32; PK = 40; PHK = 56; VP = 64; TMP = 72
    a('v_lshl_add_u32 v8, v3, 2, v4')
    a('v_lshlrev_b32 v8, 6, v8')
    a('v_lshl_add_u32 v8, v5, 3, v8')
    a('v_add_u32 v8, 0x%x, v8' % S1_WPHI)
    for Fi in range(2):
        for h in range(2):
            a('ds_read_b64_tr_b16 v[%d:%d], v8 offset:%d' % (WA + 4 * Fi + 2 * h, WA + 4 * Fi + 2 * h + 1, h * 1024 + Fi * 32))
    for i in range(4):
        a('v_cvt_pk_bf16_f32 v%d, v%d, v%d' % (QB + i, ACC + 2 * i, ACC + 2 * i + 1))
        a('v_cvt_pk_bf16_f32 v%d, v%d, v%d' % (KB + i, ACC + 8 + 2 * i, ACC + 8 + 2 * i + 1))
    a('v_cndmask_b32 v%d, v%d, 1.0, s[60:61]' % (ACC + 20, ACC + 20))
    for i in range(1, 4):
        a('v_cndmask_b32 v%d, v%d, 0, s[60:61]' % (ACC + 20 + i, ACC + 20 + i))
    for i in range(4):
        a('v_cvt_pk_bf16_f32 v%d, v%d, v%d' % (VP + i, ACC + 16 + 2 * i, ACC + 16 + 2 * i + 1))
    for i in range(16): a('v_mov_b32 v%d, 0' % (PQ + i))
    a('s_waitcnt lgkmcnt(0)')
    for Fi in range(2):
        a('v_mfma_f32_16x16x32_bf16 %s, %s, %s, %s' % (vr(PK + 4 * Fi), vr(WA + 4 * Fi), vr(KB), vr(PK + 4 * Fi)))
        a('v_mfma_f32_16x16x32_bf16 %s, %s, %s, %s' % (vr(PQ + 4 * Fi), vr(WA + 4 * Fi), vr(QB), vr(PQ + 4 * Fi)))
    softmax_pair(PK, PHK, TMP)
    l1 = newlbl('zp'); l2 = newlbl('zq')
    a('s_cmp_lg_u32 s64, 0')
    a('s_cbranch_scc1 %s' % l1)
    wait_dep(7, ['s4'], 16)
    a('s_branch %s' % l2)
    a.label(l1)
    a('s_barrier')
    a.label(l2)
    a('s_lshl_b32 s10, s5, 4')
    a('v_add_u32 v9, s10, v2')
    a('v_lshlrev_b32 v10, 7, v9')
    a('v_lshl_add_u32 v10, v3, 4, v10')
    a('v_add_u32 v10, 0x%x, v10' % S1_PHIK)
    a('ds_write_b128 v10, %s' % vr(PHK))
    a('ds_write_b128 v10, %s offset:64' % vr(PHK + 4))
    a('v_lshlrev_b32 v10, 6, v9')
    a('v_lshl_add_u32 v10, v3, 4, v10')
    a('v_add_u32 v10, 0x%x, v10' % S1_VV)
    a('ds_write_b128 v10, %s' % vr(VP))
    a('s_waitcnt lgkmcnt(0)')
    a('s_barrier')
    a('v_lshl_add_u32 v8, v3, 3, v4')
    a('s_and_b32 s10, s5, 1')
    a('s_lshl_b32 s10, s10, 5')
    a('s_add_u32 s10, s10, 0x%x' % S1_VV)
    a('v_lshlrev_b32 v9, 6, v8')
    a('v_lshl_add_u32 v9, v5, 3, v9')
    a('v_add_u32 v9, s10, v9')
    a('s_lshr_b32 s10, s5, 1')
    a('s_lshl_b32 s10, s10, 5')
    a('s_add_u32 s10, s10, 0x%x' % S1_PHIK)
    a('v_lshlrev_b32 v10, 7, v8')
    a('v_lshl_add_u32 v10, v5, 3, v10')
    a('v_add_u32 v10, s10, v10')
    KA = 96; KBf = 112; KD = 128
    for t in range(4):
        for h in range(2):
            a('ds_read_b64_tr_b16 v[%d:%d], v9 offset:%d' % (KA + 4 * t + 2 * h, KA + 4 * t + 2 * h + 1, (32 * t + 4 * h) * 64))
            a('ds_read_b64_tr_b16 v[%d:%d], v10 offset:%d' % (KBf + 4 * t + 2 * h, KBf + 4 * t + 2 * h + 1, (32 * t + 4 * h) * 128))
    for i in range(4): a('v_mov_b32 v%d, 0' % (KD + i))
    a('s_waitcnt lgkmcnt(0)')
    for t in range(4):
        a('v_mfma_f32_16x16x32_bf16 %s, %s, %s, %s' % (vr(KD), vr(KA + 4 * t), vr(KBf + 4 * t), vr(KD)))
    a('s_lshl_b32 s10, s4, 13')
    a('s_and_b32 s11, s5, 1'); a('s_lshl_b32 s11, s11, 12'); a('s_add_u32 s10, s10, s11')
    a('s_lshr_b32 s11, s5, 1'); a('s_lshl_b32 s11, s11, 6'); a('s_add_u32 s10, s10, s11')
    a('v_lshlrev_b32 v8, 10, v3')
    a('v_lshl_add_u32 v8, v2, 2, v8')
    a('v_add_u32 v8, s10, v8')
    for i in range(4):
        a('buffer_atomic_add_f32 v%d, v8, s[52:55], 0 offen offset:%d' % (KD + i, 256 * i))
    softmax_pair(PQ, PHQ, TMP)
    get_tag()
    signal(0, ['s4'], 's3')
    stamp()

def stage_S2a():
    CUR['sc'] = '' if FAST else ' sc1'
    lsrd(40, 'KVP', SZ_KVP)
    lsrd(52, 'O', SZ_X)
    lsk = newlbl('nopf')
    a('s_cmp_eq_u32 s74, 0')
    a('s_cbranch_scc1 %s' % lsk)
    srd(44, 'wo', 0, D * D * 2)
    W_dma64(44, R0, D)
    a.label(lsk)
    wait_dep(0, ['s4'], 16)
    stamp()
    a('s_lshl_b32 s10, s4, 13')
    a('v_lshlrev_b32 v8, 4, v0')
    a('v_add_u32 v8, s10, v8')
    PT = 72
    a('buffer_load_dwordx4 %s, v8, s[40:43], 0 offen' % vr(PT))
    a('s_waitcnt vmcnt(0)')
    a('v_cvt_pk_bf16_f32 v%d, v%d, v%d' % (PT + 4, PT, PT + 1))
    a('v_cvt_pk_bf16_f32 v%d, v%d, v%d' % (PT + 5, PT + 2, PT + 3))
    a('v_lshlrev_b32 v9, 3, v0')
    a('v_add_u32 v9, %d, v9' % S2A_KV)
    a('ds_write_b64 v9, v[%d:%d]' % (PT + 4, PT + 5))
    a('s_waitcnt lgkmcnt(0)')
    a('s_barrier')
    a('v_lshlrev_b32 v9, 7, v2')
    a('v_lshl_add_u32 v9, v3, 4, v9')
    a('v_add_u32 v9, %d, v9' % S2A_KV)
    AF = 24; OD = 40
    for Tm in range(2):
        for u in range(2):
            a('ds_read_b128 %s, v9 offset:%d' % (vr(AF + 8 * Tm + 4 * u), Tm * 2048 + u * 64))
    for i in range(8): a('v_mov_b32 v%d, 0' % (OD + i))
    a('s_waitcnt lgkmcnt(0)')
    for u in range(2):
        for Tm in range(2):
            a('v_mfma_f32_16x16x32_bf16 %s, %s, %s, %s' % (vr(OD + 4 * Tm), vr(AF + 8 * Tm + 4 * u), vr(PHQ + 4 * u), vr(OD + 4 * Tm)))
    a('v_cndmask_b32 v48, 0, v%d, s[60:61]' % (OD + 4))
    allreduce_g(48, 49, 'v_add_f32')
    a('v_add_f32 v48, %s, v48' % f32hex(1e-6))
    a('v_rcp_f32 v48, v48')
    for i in range(8): a('v_mul_f32 v%d, v%d, v48' % (OD + i, OD + i))
    for i in range(4): a('v_cvt_pk_bf16_f32 v%d, v%d, v%d' % (50 + i, OD + 2 * i, OD + 2 * i + 1))
    a('s_mov_b32 s10, 896')
    a('v_mul_lo_u32 v12, v7, s10')
    a('s_mul_i32 s10, s4, 56')
    a('v_and_b32 v13, 1, v3'); a('v_lshlrev_b32 v13, 5, v13')
    a('v_lshrrev_b32 v14, 1, v3'); a('v_lshlrev_b32 v14, 3, v14')
    a('v_add3_u32 v12, v12, v13, v14')
    a('v_add_u32 v12, s10, v12')
    a('buffer_store_dwordx2 v[50:51], v12, s[52:55], 0 offen' + CUR['sc'])
    a('s_mov_b32 exec_hi, 0x0000ffff')
    a('buffer_store_dwordx2 v[52:53], v12, s[52:55], 0 offen offset:16' + CUR['sc'])
    a('s_mov_b32 exec_hi, -1')
    a('s_lshl_b32 s62, s3, 1'); a('s_add_u32 s63, s62, 1')
    signal(1, ['s62', 's63'], 's4')
    stamp()

def stage_small(kind, wreg, areg, target, prefetch):
    CUR['sc'] = '' if (FAST and kind != 'w1') else ' sc1'
    typeB_rows()
    if kind == 'wo':
        lsrd(44, 'O', SZ_X); srd(48, 'xsrc', 0, SZ_X); lsrd(52, 'XP', SZ_X)
    elif kind == 'w1':
        lsrd(44, 'XP', SZ_X); lsrd(52, 'HH', SZ_X); lsrd(56, 'STATS', SZ_STATS)
    else:
        lsrd(44, 'HH', SZ_X); lsrd(48, 'XP', SZ_X); lsrd(52, 'X1', SZ_X); lsrd(56, 'STATS', SZ_STATS)
    st = {'wo': 1, 'w1': 2, 'w2': 3}[kind]
    A_dma_addr(shifted=(kind == 'w2'))
    if kind == 'w1':
        a('s_waitcnt vmcnt(0)')
        a('s_barrier')
        colsum_prepass(4, wreg, True)
    if kind == 'w2':
        a('s_sub_u32 s62, s6, 1'); a('s_max_i32 s62, s62, 0')
        a('s_add_u32 s63, s6, 1'); a('s_min_u32 s63, s63, 31')
        wait_dep(st, ['s6', 's62', 's63'], 7)
    else:
        wait_dep(st, ['s6'], 16 if kind == 'wo' else 7)
    stamp()
    A_dma_issue(44, areg)
    out_addrB(13)
    RES = 112
    if kind in ('wo', 'w2'):
        a('buffer_load_dwordx2 v[%d:%d], v13, s[48:51], 0 offen' % (RES, RES + 1))
        a('buffer_load_dwordx2 v[%d:%d], v13, s[48:51], 0 offen offset:32' % (RES + 2, RES + 3))
    if kind == 'w2':
        a('v_lshlrev_b32 v14, 3, v7')
        a('buffer_load_dwordx2 v[%d:%d], v14, s[56:59], 0 offen' % (RES + 4, RES + 5))
    tr_bases64(wreg, 120)
    a('s_waitcnt vmcnt(0)')
    a('s_barrier')
    stamp()
    A_frag_read(areg)
    a('s_waitcnt lgkmcnt(0)')
    a('s_barrier')
    prefetch()
    if kind == 'w1':
        ln_stats(2, MISC + 12)
        l = newlbl('nostat')
        a('s_or_b32 s10, s7, s13')
        a('s_cmp_lg_u32 s10, 0')
        a('s_cbranch_scc1 %s' % l)
        a('v_lshlrev_b32 v14, 3, v7')
        a('s_mov_b64 exec, 0xffff')
        a('buffer_store_dwordx2 v[%d:%d], v14, s[56:59], 0 offen sc1' % (MISC + 12, MISC + 13))
        a('s_mov_b64 exec, -1')
        a.label(l)
    stamp()
    gemm64(120)
    if kind == 'w1':
        cs_read([0, 1], 100, 's13')
        a('s_waitcnt lgkmcnt(0)')
        ln_apply(ACC, 8, 100, MISC + 12)
    stamp()
    T0 = MISC
    if kind == 'wo':
        unpack4(RES, T0); unpack4(RES + 2, T0 + 4)
        for i in range(8): a('v_add_f32 v%d, v%d, v%d' % (ACC + i, ACC + i, T0 + i))
    elif kind == 'w1':
        for i in range(8): gelu(ACC + i, T0 + 2 * (i & 3))
    else:
        unpack4(RES, T0); unpack4(RES + 2, T0 + 4)
        for i in range(8):
            a('v_sub_f32 v%d, v%d, v%d' % (T0 + i, T0 + i, RES + 4))
            a('v_fmac_f32 v%d, v%d, v%d' % (ACC + i, T0 + i, RES + 5))
    for i in range(4):
        a('v_cvt_pk_bf16_f32 v%d, v%d, v%d' % (T0 + 8 + i, ACC + 2 * i, ACC + 2 * i + 1))
    st16_addr(14, 13)
    swap16(T0 + 8)
    a(('buffer_store_dwordx4 %s, v14, s[52:55], 0 offen' + CUR['sc']) % vr(T0 + 8))
    signal(st + 1, ['s6'], 's7')
    stamp()

S5_W = R1
def stage_S5():
    CUR['sc'] = '' if FAST else ' sc1'
    NT = 7
    typeA_rows()
    srd(40, 'w3', 0, D * F * 2)
    lsrd(44, 'X1', SZ_X)
    lsrd(52, 'G', SZ_G)
    lpf = newlbl('s5pf')
    a('s_cmp_lg_u32 s74, 0')
    a('s_cbranch_scc1 %s' % lpf)
    W_dma_generic(40, F * 2, D, NT, [(0, 224, 14)], S5_W)
    a.label(lpf)
    a('s_waitcnt vmcnt(0)')
    a('s_barrier')
    stamp()
    colsum_prepass(NT, S5_W, False)
    a('s_lshl_b32 s62, s3, 1'); a('s_add_u32 s63, s62, 1')
    wait_dep(4, ['s62', 's63'], 7)
    stamp()
    A_regs_path(44, R0)
    stamp()
    ST = MISC + 12
    ln_stats(1, ST)
    de, do = gemm_setup_addr(NT, S5_W, 10, [MISC], [MISC + 1], D, plain=[MISC + 2, MISC + 3])
    a('s_mov_b32 s10, %d' % (F * 2))
    a('v_mul_lo_u32 v13, v7, s10')
    a('s_mul_i32 s10, s4, 224')
    a('v_lshlrev_b32 v14, 3, v3')
    a('v_add3_u32 v13, v13, v14, s10')
    stamp()
    gemm_loop(de, do, NT, 14)
    cs_read(range(7), WST)
    a('s_waitcnt lgkmcnt(0)')
    ln_apply(ACC, 28, WST, ST)
    stamp()
    T0 = MISC
    st16_addr(14, 13)
    PK = 16
    for T in range(NT):
        for i in range(4): gelu(ACC + 4 * T + i, T0 + 2 * i)
        a('v_cvt_pk_bf16_f32 v%d, v%d, v%d' % (PK + 2 * T, ACC + 4 * T, ACC + 4 * T + 1))
        a('v_cvt_pk_bf16_f32 v%d, v%d, v%d' % (PK + 2 * T + 1, ACC + 4 * T + 2, ACC + 4 * T + 3))
        if T & 1:
            swap16(PK + 2 * T - 2)
            a(('buffer_store_dwordx4 %s, v14, s[52:55], 0 offen offset:%d' + CUR['sc']) % (vr(PK + 2 * T - 2), 32 * (T - 1)))
    a(('buffer_store_dwordx2 v[%d:%d], v13, s[52:55], 0 offen offset:%d' + CUR['sc']) % (PK + 12, PK + 13, 32 * 6))
    a('s_lshl_b32 s62, s3, 1'); a('s_add_u32 s63, s62, 1')
    signal(5, ['s62', 's63'], 's4')
    stamp()

def stage_S6():
    NC = 14
    CUR['sc'] = '' if FAST else ' sc1'
    typeB_rows()
    srd(40, 'w4', 0, D * F * 2)
    lsrd(44, 'G', SZ_G)
    lsrd(48, 'XP', SZ_X)
    lsrd(56, 'X1', SZ_X)
    srd(52, 'xdst', 0, SZ_X)
    a('v_lshrrev_b32 v16, 3, v1')
    a('s_lshl_b32 s10, s5, 3')
    a('v_add_u32 v16, s10, v16')
    a('v_mul_u32_u24 v16, 896, v16')
    a('v_bfe_u32 v9, v1, 4, 1')
    a('s_and_b32 s10, s5, 1')
    a('s_lshl_b32 s10, s10, 1')
    a('v_or_b32 v9, s10, v9')
    a('v_bfe_u32 v10, v1, 1, 2')
    a('v_xor_b32 v9, v9, v10')
    a('v_lshlrev_b32 v9, 5, v9')
    a('v_and_b32 v10, 1, v1')
    a('v_lshlrev_b32 v10, 4, v10')
    a('v_add3_u32 v16, v16, v9, v10')
    a('s_lshl_b32 s10, s7, 7')
    a('v_add_u32 v16, s10, v16')
    a('s_lshl_b32 s10, s5, 2')
    a('v_add_u32 v17, s10, v3')
    a('v_and_b32 v10, 15, v17')
    a('v_xor_b32 v9, v2, v10')
    a('v_lshlrev_b32 v9, 4, v9')
    a('s_lshl_b32 s10, s6, 6')
    a('v_add_u32 v17, s10, v17')
    a('s_mov_b32 s10, %d' % (F * 2))
    a('v_mul_lo_u32 v17, v17, s10')
    a('v_add_u32 v17, v17, v9')
    a('s_lshl_b32 s12, s5, 10')
    def dmaW(kc):
        b = (kc & 3) * 16384 + 65536
        for i in range(2):
            a('s_add_u32 m0, s12, %d' % (b + i * 8192))
            a('s_mov_b32 s10, %d' % ((kc * 128 + i * 64) * 896))
            a('buffer_load_dwordx4 v16, s[40:43], s10 offen lds')
    def dmaA(kc):
        b = (kc & 3) * 16384
        for i in range(2):
            a('s_add_u32 m0, s12, %d' % (b + i * 8192))
            a('s_mov_b32 s10, %d' % (kc * 256 + i * 32 * F * 2))
            a('buffer_load_dwordx4 v17, s[44:47], s10 offen lds')
    dmaW(0); dmaW(1); dmaW(2)
    wait_dep(5, ['s6'], 16)
    stamp()
    dmaA(0); dmaA(1); dmaA(2)
    out_addrB(13)
    tr_bases64(65536, 18)
    a('s_lshr_b32 s10, s5, 1')
    a('s_lshl_b32 s10, s10, 12')
    a('v_lshlrev_b32 v24, 8, v2')
    a('v_add_u32 v24, s10, v24')
    a('v_xor_b32 v25, v3, v2')
    for t in range(4):
        a('v_xor_b32 v%d, %d, v25' % (26 + t, 4 * t))
        a('v_lshl_add_u32 v%d, v%d, 4, v24' % (26 + t, 26 + t))
    RES = 40
    for i in range(8): a('v_mov_b32 v%d, 0' % (ACC + i))
    BF = 160
    def reads(kc, t, slot):
        bo = (kc & 3) * 16384
        a('ds_read_b128 %s, v%d offset:%d' % (vr(BF + 4 * slot), 26 + t, bo))
        for T in range(2):
            for h in range(2):
                a('ds_read_b64_tr_b16 v[%d:%d], v%d offset:%d' % (FRG + 8 * slot + 4 * T + 2 * h, FRG + 8 * slot + 4 * T + 2 * h + 1, 18 + T, bo + (32 * t + 4 * h) * 128))
    def iteration(kc, ops, early):
        last = max(i for i, t_ in enumerate(ops) if t_ == ('c', kc))
        a('s_waitcnt vmcnt(%d)' % (len(ops) - 1 - last))
        a('s_barrier')
        reads(kc, 0, 0); reads(kc, 1, 1); reads(kc, 2, 2)
        if kc + 3 < NC:
            dmaW(kc + 3); dmaA(kc + 3); ops += [('c', kc + 3)] * 4
        if kc == NC - 3:
            a('buffer_load_dwordx2 v[%d:%d], v13, s[48:51], 0 offen' % (RES, RES + 1))
            a('buffer_load_dwordx2 v[%d:%d], v13, s[48:51], 0 offen offset:32' % (RES + 2, RES + 3))
            a('buffer_load_dwordx2 v[%d:%d], v13, s[56:59], 0 offen' % (RES + 4, RES + 5))
            a('buffer_load_dwordx2 v[%d:%d], v13, s[56:59], 0 offen offset:32' % (RES + 6, RES + 7))
            ops += [('r', 0)] * 4
        for t in range(4):
            if t == 0:
                a('s_waitcnt lgkmcnt(10)')
            elif t == 1:
                reads(kc, 3, 0); a('s_waitcnt lgkmcnt(10)')
            elif t == 2: a('s_waitcnt lgkmcnt(5)')
            else: a('s_waitcnt lgkmcnt(0)')
            sl = t % 3
            for T in range(2):
                a('v_mfma_f32_16x16x32_bf16 %s, %s, %s, %s' % (vr(ACC + 4 * T), vr(FRG + 8 * sl + 4 * T), vr(BF + 4 * sl), vr(ACC + 4 * T)))
        if early and kc in (11, 12, 13):
            sub = {11: [4, 5, 8], 12: [6, 7, 9], 13: [0, 1]}[kc]
            W_dma_generic(60 + 0, 3 * D * 2, D, 6, S1SEGS, S1_W, only=sub) if False else None
            W_dma_generic(84 if False else 44, 3 * D * 2, D, 6, S1SEGS, S1_W, only=sub)
            a('s_lshl_b32 s12, s5, 10')
            ops += [('w', kc)] * len(sub)
    ops = [('c', 0)] * 2 + [('c', 1)] * 2 + [('c', 2)] * 2 + [('c', 0)] * 2 + [('c', 1)] * 2 + [('c', 2)] * 2
    for kc in range(11):
        iteration(kc, ops, False)
    lno = newlbl('s6no'); ljn = newlbl('s6j')
    a('s_cmp_lg_u32 s64, 0')
    a('s_cbranch_scc1 %s' % lno)
    srd(44, 'wqkv', 0, D * 3 * D * 2)
    o2 = list(ops)
    for kc in range(11, NC): iteration(kc, o2, True)
    a('s_mov_b32 s75, 1')
    a('s_branch %s' % ljn)
    a.label(lno)
    o2 = list(ops)
    for kc in range(11, NC): iteration(kc, o2, False)
    a.label(ljn)
    stamp()
    T0 = MISC
    a('s_waitcnt vmcnt(0)')
    unpack4(RES, T0); unpack4(RES + 2, T0 + 4)
    for i in range(8): a('v_add_f32 v%d, v%d, v%d' % (ACC + i, ACC + i, T0 + i))
    unpack4(RES + 4, T0); unpack4(RES + 6, T0 + 4)
    for i in range(8): a('v_add_f32 v%d, v%d, v%d' % (ACC + i, ACC + i, T0 + i))
    for i in range(4):
        a('v_cvt_pk_bf16_f32 v%d, v%d, v%d' % (T0 + 8 + i, ACC + 2 * i, ACC + 2 * i + 1))
    st16_addr(14, 13)
    swap16(T0 + 8)
    a(('buffer_store_dwordx4 %s, v14, s[52:55], 0 offen' + CUR['sc']) % vr(T0 + 8))
    signal(6, ['s6'], 's7')
    lr = newlbl('s6r')
    a('s_cmp_eq_u32 s75, 0')
    a('s_cbranch_scc1 %s' % lr)
    W_dma_generic(44, 3 * D * 2, D, 6, S1SEGS, S1_W, only=[2, 3, 10])
    a.label(lr)
    stamp()

def build():
    a.raw('.p2align 8')
    a.raw('.globl %s' % KNAME)
    a.raw('.type %s,@function' % KNAME)
    a.raw('%s:' % KNAME)
    a('s_cmp_ge_u32 s2, 256')
    a('s_cbranch_scc1 L_end')
    a('s_load_dwordx16 s[16:31], s[0:1], 0x0')
    a('s_load_dwordx8 s[32:39], s[0:1], 0x40')
    a('''s_and_b32 s10, s2, 7
         s_lshr_b32 s11, s2, 3
         s_and_b32 s12, s11, 1
         s_lshl_b32 s12, s12, 3
         s_add_u32 s3, s10, s12
         s_lshr_b32 s4, s11, 1
         s_mul_i32 s12, s11, 37
         s_lshr_b32 s12, s12, 8
         s_mul_i32 s13, s12, 7
         s_sub_u32 s7, s11, s13
         s_lshr_b32 s13, s12, 1
         s_lshl_b32 s13, s13, 3
         s_add_u32 s13, s13, s10
         s_lshl_b32 s13, s13, 1
         s_and_b32 s6, s12, 1
         s_add_u32 s6, s6, s13
         s_cmp_lt_u32 s11, 28
         s_cselect_b32 s74, 1, 0
         v_and_b32 v1, 63, v0
         v_and_b32 v2, 15, v1
         v_lshrrev_b32 v3, 4, v1
         v_bfe_u32 v4, v1, 2, 2
         v_and_b32 v5, 3, v1
         v_lshrrev_b32 v6, 6, v0
         v_readfirstlane_b32 s5, v6
         s_mov_b32 s60, 0
         s_mov_b32 s61, 0xffff0000''')
    assert all((m * 37) >> 8 == m // 7 for m in range(32))
    m56, sh56 = magic_div(56, 448)
    for i in range(7):
        r = OFFS + i
        a('v_add_u32 v8, %d, v1' % (64 * i))
        a('v_mul_u32_u24 v9, %d, v8' % m56)
        a('v_lshrrev_b32 v9, %d, v9' % sh56)
        a('v_mul_u32_u24 v10, 56, v9')
        a('v_sub_u32 v8, v8, v10')
        a('v_lshrrev_b32 v10, 1, v9')
        a('v_xor_b32 v8, v8, v10')
        a('v_lshlrev_b32 v8, 4, v8')
        a('v_mul_u32_u24 v9, 896, v9')
        a('v_add_u32 v%d, v8, v9' % r)
    a('v_lshrrev_b32 v8, 1, v2')
    a('v_xor_b32 v8, v8, v3')
    a('v_mul_u32_u24 v9, 896, v2')
    a('v_lshl_add_u32 v%d, v8, 4, v9' % FAE)
    a('v_xor_b32 v8, 4, v8')
    a('v_lshl_add_u32 v%d, v8, 4, v9' % FAO)
    for i in range(4): a('v_mov_b32 v%d, 0x3f803f80' % (ONES + i))
    a('s_waitcnt lgkmcnt(0)')
    srd(76, 'dbg', 0, 256)
    srd(92, 'ws', FLAG_OFF, 16 * 4096)
    a('s_mov_b32 s90, 0'); a('s_mov_b32 s91, 0')
    a('s_or_b32 s10, s2, s5')
    a('s_cmp_lg_u32 s10, 0')
    a('s_cbranch_scc1 L_notag')
    a('s_memrealtime s[10:11]')
    a('s_waitcnt lgkmcnt(0)')
    a('s_or_b32 s10, s10, 1')
    a('v_mov_b32 v10, s10'); a('v_mov_b32 v11, s11'); a('v_mov_b32 v8, 0')
    a('s_mov_b64 exec, 1')
    a('buffer_store_dwordx2 v[10:11], v8, s[76:79], 0 offen sc1')
    a('s_mov_b64 exec, -1')
    a.label('L_notag')
    if STAMPS: srd(84, 'ws', 60 * MB, 4 * MB)
    a('s_mov_b32 s64, 0')
    a('s_mov_b32 s75, 0')
    a.flush_hazards(4)
    a.label('L_layer')
    a('s_lshl_b32 s10, s64, 25')
    a('s_add_u32 s66, s38, s10'); a('s_addc_u32 s67, s39, 0')
    a('s_add_u32 s10, s38, 0x%x' % WOFF['X2']); a('s_addc_u32 s11, s39, 0')
    a('s_cmp_eq_u32 s64, 0')
    a('s_cselect_b32 s68, s16, s10'); a('s_cselect_b32 s69, s17, s11')
    a('s_cselect_b32 s70, s10, s34'); a('s_cselect_b32 s71, s11, s35')
    a('s_mul_i32 s72, s64, %d' % CNT_PER_LAYER)
    nstamp[0] = 0
    stamp()
    stage_S1()
    stage_S2a()
    lB = newlbl('skipB'); lW = newlbl('warm')
    a('s_cmp_eq_u32 s74, 0')
    a('s_cbranch_scc1 %s' % lW)
    def pf_w1():
        srd(40, 'w1', 0, D * D * 2); W_dma64(40, R1, D)
    def pf_w2():
        srd(40, 'w2', 0, D * D * 2); W_dma64(40, R0, D)
    stage_small('wo', R0, R1, 16, pf_w1)
    stage_small('w1', R1, R0, 23, pf_w2)
    def pf_w3():
        srd(40, 'w3', 0, D * F * 2); W_dma_generic(40, F * 2, D, 7, [(0, 224, 14)], S5_W)
    stage_small('w2', R0, R1, 30, pf_w3)
    a('s_branch %s' % lB)
    a.label(lW)
    a('s_cmp_lg_u32 s64, 0')
    a('s_cbranch_scc1 %s' % lB)
    a('s_lshr_b32 s10, s2, 3')
    a('s_sub_u32 s10, s10, 28')
    a('s_mul_i32 s10, s10, %d' % (D * F * 2 // 4))
    a('v_lshlrev_b32 v8, 4, v0')
    a('v_add_u32 v8, s10, v8')
    for wname in ('w4',):
        srd(40, wname, 0, D * F * 2)
        for i in range(49):
            a('s_mov_b32 s10, %d' % (i * 8192))
            a('buffer_load_dwordx4 %s, v8, s[40:43], s10 offen' % vr(16 + 4 * (i % 16)))
            if i % 16 == 15: a('s_waitcnt vmcnt(8)')
        a('s_waitcnt vmcnt(0)')
    a.label(lB)
    stage_S5()
    lB2 = newlbl('skipB')
    a('s_cmp_eq_u32 s74, 0')
    a('s_cbranch_scc1 %s' % lB2)
    stage_S6()
    a.label(lB2)
    a('s_add_u32 s64, s64, 1')
    a('s_cmp_lt_u32 s64, 2')
    a.flush_hazards(13)
    a('s_cbranch_scc1 L_layer')
    a.label('L_abort')
    a.label('L_end')
    a('s_endpgm')
    hdr = '; @launch grid=(256,1,1) block=(512,1,1) lds=%d\n' % LDS_TOTAL
    txt = hdr + '.amdgcn_target "amdgcn-amd-amdhsa--gfx950"\n.text\n' + a.text()
    txt += '''.section .rodata,"a"
.p2align 6
.amdhsa_kernel %s
  .amdhsa_next_free_vgpr 256
  .amdhsa_next_free_sgpr 100
  .amdhsa_accum_offset 256
  .amdhsa_group_segment_fixed_size 0
  .amdhsa_kernarg_size 96
  .amdhsa_user_sgpr_count 2
  .amdhsa_user_sgpr_kernarg_segment_ptr 1
  .amdhsa_system_sgpr_workgroup_id_x 1
.end_amdhsa_kernel
''' % KNAME
    return txt

if __name__ == '__main__':
    out = sys.argv[1] if len(sys.argv) > 1 else 'pers.s'
    open(out, 'w').write(build())
    print('written', out, 'nops', a.nops_inserted)
```
